```python
import torch

def _softmax(x, axis=-1):
    return torch.softmax(x, dim=axis)

def _gelu(x):
    return torch.nn.functional.gelu(x, approximate='tanh')

def _silu(x):
    return torch.nn.functional.silu(x)

def _sigmoid(x):
    return torch.sigmoid(x)

def _layernorm(x, axis=-1, eps=1e-05):
    m = x.mean(dim=axis, keepdim=True)
    v = x.var(dim=axis, keepdim=True, unbiased=False)
    return (x - m) / torch.sqrt(v + eps)

def _scatter_add(tgt, idx, src, axis=0):
    return tgt.clone().index_add_(axis, idx, src)

def _segment_sum(src, seg, n):
    out = torch.zeros((n,) + src.shape[1:], dtype=src.dtype)
    return out.index_add_(0, seg, src)

def _pad(x, pw):
    flat = tuple((v for pair in reversed(pw) for v in pair))
    return torch.nn.functional.pad(x, flat)
kernel_name = 'adaLN_cond__grouped_kv_mqa__dense_activation_silu__prompt'

def setup_inputs():

    _w = lambda a: (lambda t: t.to(torch.bfloat16) if t.is_floating_point() else t)(torch.as_tensor(a))

    def _A_setup():
        B, S, D, H = (1, 2048, 512, 32)
        Dh = D // H
        return {'x': _w((lambda *s: torch.randn(*s, dtype=torch.bfloat16) * 0.05)(B, S, D)), 'wq': _w((lambda *s: torch.randn(*s, dtype=torch.bfloat16) * 0.05)(D, H * Dh)), 'wk': _w((lambda *s: torch.randn(*s, dtype=torch.bfloat16) * 0.05)(D, Dh)), 'wv': _w((lambda *s: torch.randn(*s, dtype=torch.bfloat16) * 0.05)(D, Dh)), 'wo': _w((lambda *s: torch.randn(*s, dtype=torch.bfloat16) * 0.05)(H * Dh, D))}
    _A_in = _A_setup()

    def _B_setup():
        B, S, D, F = (1, 2048, 512, 1792)
        return {'x': _w((lambda *s: torch.randn(*s, dtype=torch.bfloat16) * 0.05)(B, S, D)), 'w1': _w((lambda *s: torch.randn(*s, dtype=torch.bfloat16) * 6.4)(D, F) * D ** (-0.5)), 'w2': _w((lambda *s: torch.randn(*s, dtype=torch.bfloat16) * 0.2)(F, D) * F ** (-0.5))}
    _B_in = _B_setup()
    return {'A_x': _A_in['x'], 'A_wq': _A_in['wq'], 'A_wk': _A_in['wk'], 'A_wv': _A_in['wv'], 'A_wo': _A_in['wo'], 'B_x': _B_in['x'], 'B_w1': _B_in['w1'], 'B_w2': _B_in['w2'], 'c': _w((lambda *s: torch.randn(*s, dtype=torch.bfloat16) * 0.1)(1, 512) * 8.0), 'w_mod': _w((lambda *s: torch.randn(*s, dtype=torch.bfloat16) * 0.1)(512, 6 * 512) * 512 ** (-0.5) * 8.0)}

def reference(A_x, A_wq, A_wk, A_wv, A_wo, B_x, B_w1, B_w2, c, w_mod):

    def _A_ref(x, wq, wk, wv, wo):
        B, S, D = x.shape
        H = 32
        Dh = D // H
        q = (lambda x, *d: x.permute(*d))((x @ wq).reshape(B, S, H, Dh), 0, 2, 1, 3)
        k = x @ wk
        v = x @ wv
        scores = torch.einsum('bhqd,bkd->bhqk', q, k) * Dh ** (-0.5)
        p = _softmax(scores, axis=-1)
        o = torch.einsum('bhqk,bkd->bhqd', p, v)
        return (lambda x, *d: x.permute(*d))(o, 0, 2, 1, 3).reshape(B, S, H * Dh) @ wo

    def _B_ref(x, w1, w2):
        h = torch.einsum('bsd,df->bsf', x, w1)
        h = _silu(h)
        out = torch.einsum('bsf,fd->bsd', h, w2)
        return out
    x = A_x
    mod = (_silu(c) @ w_mod).reshape(c.shape[0], 6, 1, -1)
    sa, ca, ga, sb, cb, gb = (mod[:, 0].clone(), mod[:, 1].clone(), mod[:, 2].clone(), mod[:, 3].clone(), mod[:, 4].clone(), mod[:, 5].clone())
    h = _layernorm(x, axis=-1) * (1 + ca) + sa
    x = x + ga * _A_ref(h, A_wq, A_wk, A_wv, A_wo)
    h = _layernorm(x, axis=-1) * (1 + cb) + sb
    x = x + gb * _B_ref(h, B_w1, B_w2)
    return x
```

```python
import re, sys

TRANS = ('v_exp_', 'v_log_', 'v_rcp_', 'v_rsq_', 'v_sqrt_', 'v_sin_', 'v_cos_')
REG_RE = re.compile(r'(?<![\w.])([vas])(?:(\d+)|\[(\d+):(\d+)\])(?![\w])')


def regs_of(tok):
    out = []
    t = tok.strip()
    for m in REG_RE.finditer(t):
        k = m.group(1)
        if m.group(2) is not None:
            out.append((k, int(m.group(2))))
        else:
            out += [(k, i) for i in range(int(m.group(3)), int(m.group(4)) + 1)]
    if re.search(r'\bvcc\b', t):
        out += [('s', 106), ('s', 107)]
    if re.search(r'\bvcc_lo\b', t):
        out += [('s', 106)]
    if re.search(r'\bvcc_hi\b', t):
        out += [('s', 107)]
    if re.search(r'\bexec\b', t):
        out += [('x', 0)]
    if re.search(r'\bm0\b', t):
        out += [('m', 0)]
    return out


def split_ops(s):
    ops, depth, cur = [], 0, ''
    for ch in s:
        if ch in '[(':
            depth += 1
        if ch in '])':
            depth -= 1
        if ch == ',' and depth == 0:
            ops.append(cur.strip())
            cur = ''
        else:
            cur += ch
    if cur.strip():
        ops.append(cur.strip())
    return ops


class Ins:
    def __init__(self, text):
        self.text = text
        t = text.split(';')[0].strip()
        self.op = t.split()[0]
        rest = t[len(self.op):].strip()
        ops = split_ops(rest)
        self.mods = ''
        if ops:
            parts = ops[-1].split(None, 1)
            if len(parts) > 1 and not ops[-1].startswith('hwreg') and not self.op.startswith('s_waitcnt'):
                ops[-1] = parts[0]
                self.mods = parts[1]
        self.ops = ops
        op = self.op
        self.rd, self.wr = [], []
        self.srcC = []
        self.srcAB = []
        self.cls = 'other'
        self.passes = 0
        self.states = 1
        self.target = None
        R = [regs_of(o) for o in ops]
        allr = [r for x in R for r in x]
        if op.startswith('v_mfma'):
            self.cls = 'mfma'
            self.passes = 8 if '32x32x16' in op else 4 if '16x16x32' in op else None
            assert self.passes, op
            self.wr = R[0]
            self.srcAB = R[1] + R[2]
            self.srcC = R[3]
            self.rd = self.srcAB + self.srcC
        elif op.startswith('v_'):
            self.cls = 'valu'
            if op.startswith(TRANS):
                self.cls = 'trans'
            if op.startswith('v_dot'):
                self.cls = 'dot'
            if op.startswith('v_permlane') and 'swap' in op:
                self.wr = allr
                self.rd = allr
            elif op.startswith(('v_add_co', 'v_sub_co', 'v_addc_co', 'v_subb_co', 'v_subrev_co', 'v_div_scale', 'v_mad_u64')):
                self.wr = R[0] + R[1]
                self.rd = [r for x in R[2:] for r in x]
            elif op == 'v_nop':
                pass
            else:
                self.wr = R[0]
                self.rd = [r for x in R[1:] for r in x]
                if op.startswith(('v_fmac', 'v_dot2c', 'v_pk_fmac', 'v_writelane')) or '_dpp' in op or '_sdwa' in op or 'op_sel:' in self.mods and op.startswith('v_cvt'):
                    self.rd += R[0]
                if op.startswith('v_cndmask') and len(ops) == 3:
                    self.rd += [('s', 106), ('s', 107)]
                if op.startswith('v_cmpx'):
                    self.wr += [('x', 0)]
        elif op.startswith(('buffer_load', 'global_load')):
            if re.search(r'\blds\b', self.mods) or '_lds_' in op:
                self.cls = 'dma'
                self.rd = allr + [('m', 0)]
            else:
                self.cls = 'vload'
                self.wr = R[0]
                self.rd = [r for x in R[1:] for r in x]
        elif op.startswith(('buffer_store', 'global_store')):
            self.cls = 'vstore'
            self.rd = allr
            self.data = R[0] if op.startswith('buffer') else R[1]
        elif op.startswith(('buffer_atomic', 'global_atomic')):
            self.cls = 'vstore'
            self.rd = allr
            self.data = R[0]
            if re.search(r'\bsc0\b', self.mods):
                self.cls = 'vload'
                self.wr = R[0]
        elif op.startswith(('buffer_wbl2', 'buffer_inv')):
            self.cls = 'vstore'
            self.data = []
        elif op.startswith('ds_'):
            if op.startswith(('ds_read', 'ds_bpermute', 'ds_permute', 'ds_swizzle')) or '_rtn' in op:
                self.cls = 'dsread'
                self.wr = R[0]
                self.rd = [r for x in R[1:] for r in x]
            else:
                self.cls = 'dswrite'
                self.rd = allr
        elif op.startswith(('s_load', 's_buffer_load', 's_memtime', 's_memrealtime')):
            self.cls = 'smem'
            self.wr = R[0]
            self.rd = [r for x in R[1:] for r in x]
        elif op == 's_waitcnt':
            self.cls = 'wait'
            self.vm = self.lgkm = None
            m = re.search(r'vmcnt\((\d+)\)', rest)
            if m:
                self.vm = int(m.group(1))
                assert self.vm <= 63
            m = re.search(r'lgkmcnt\((\d+)\)', rest)
            if m:
                self.lgkm = int(m.group(1))
                assert self.lgkm <= 15
        elif op == 's_nop':
            self.cls = 'nop'
            self.states = int(ops[0], 0) + 1
        elif op in ('s_branch',) or op.startswith('s_cbranch'):
            self.cls = 'branch'
            self.target = ops[0]
            if 'vcc' in op:
                self.rd = [('s', 106), ('s', 107)]
        elif op == 's_endpgm':
            self.cls = 'end'
        elif op in ('s_barrier', 's_setprio', 's_sleep', 's_sethalt'):
            self.cls = 'other'
        elif op.startswith('s_cmp') or op.startswith('s_bitcmp'):
            self.cls = 'salu'
            self.rd = allr
        elif op.startswith('s_'):
            self.cls = 'salu'
            self.wr = R[0]
            self.rd = [r for x in R[1:] for r in x]
            if op.startswith(('s_addk', 's_mulk', 's_bitset')):
                self.rd += R[0]
            if 'saveexec' in op:
                self.wr = self.wr + [('x', 0)]
                self.rd = self.rd + [('x', 0)]
        else:
            raise ValueError('unknown instruction ' + text)
        self.rds, self.wrs = set(self.rd), set(self.wr)

    def is_valu(self):
        return self.cls in ('valu', 'trans', 'dot')


class Label:
    def __init__(self, name):
        self.name = name
        self.cls = 'label'


def need_states(p, c):
    n = 0
    pv = p.is_valu()
    cv = c.is_valu()
    cmem = c.cls in ('vload', 'vstore', 'dma', 'dsread', 'dswrite')
    pw = p.wrs
    pw_v = {r for r in pw if r[0] in 'va'}
    pw_s = {r for r in pw if r[0] == 's'}
    if pv:
        if c.cls == 'mfma' and pw_v & c.rds:
            n = max(n, 3 if p.cls == 'dot' else 2)
        if p.cls == 'trans' and (cv or cmem) and c.cls != 'trans' and pw_v & (c.rds | c.wrs):
            n = max(n, 1)
        if p.cls == 'dot' and pw_v & (c.rds | c.wrs):
            if c.op == p.op:
                ab = set(regs_of(c.ops[1]) + regs_of(c.ops[2]))
                if pw_v & ab:
                    n = max(n, 3)
            else:
                n = max(n, 3)
        if pw_s:
            if cv and pw_s & c.rds:
                n = max(n, 4 if c.op.startswith(('v_readlane', 'v_writelane', 'v_div_fmas')) else 2)
            if c.cls in ('vload', 'vstore', 'dma') and pw_s & c.rds:
                n = max(n, 5)
            if c.cls in ('salu', 'branch', 'smem') and pw_s & c.rds:
                n = max(n, 5 if c.cls == 'branch' else 2)
        if pw_v & c.rds:
            if c.op.startswith(('v_readfirstlane', 'v_readlane')):
                n = max(n, 1)
            if c.op.startswith('v_permlane') or '_dpp' in c.op:
                n = max(n, 2)
        if ('_sdwa' in p.op or 'op_sel:' in p.mods) and cv and pw_v & (c.rds | c.wrs):
            n = max(n, 1)
        if ('x', 0) in pw:
            n = max(n, 5)
    if p.cls == 'mfma':
        P = p.passes
        D = p.wrs
        if c.cls == 'mfma':
            if D & set(c.srcAB):
                n = max(n, P + 4)
            if D & set(c.srcC):
                if not (c.srcC == p.wr and c.passes == P):
                    n = max(n, P + 2)
            elif D & c.wrs:
                n = max(n, P + 2)
        elif (cv or cmem) and D & (c.rds | c.wrs):
            n = max(n, P + 4)
        if (cv or c.cls in ('vload', 'dsread')) and set(p.srcC) & c.wrs:
            n = max(n, P - 1)
    if p.cls == 'salu' and ('m', 0) in pw and c.cls == 'dma':
        n = max(n, 1)
    if p.cls == 'vstore' and len(getattr(p, 'data', [])) >= 3 and set(p.data) & c.wrs:
        n = max(n, 2)
    return n


class Kern:
    def __init__(self, name):
        self.name = name
        self.items = []
        self.nlab = 0

    def __call__(self, text):
        for line in text.strip().split('\n'):
            line = line.strip()
            if not line or line.startswith(';'):
                continue
            if line.endswith(':'):
                self.items.append(Label(line[:-1]))
            else:
                self.items.append(Ins(line))

    def label(self, name):
        self.items.append(Label(name))

    def newlabel(self, base='L'):
        self.nlab += 1
        return f'.{base}_{self.name}_{self.nlab}'

    def _preds(self):
        it = self.items
        lab = {x.name: i for i, x in enumerate(it) if x.cls == 'label'}
        preds = {i: [] for i in range(len(it))}
        for i, x in enumerate(it):
            if x.cls == 'end':
                continue
            if x.cls == 'branch':
                assert x.target in lab, x.target
                preds[lab[x.target]].append(i)
                if x.op == 's_branch':
                    continue
            if i + 1 < len(it):
                preds[i + 1].append(i)
        return preds, lab

    def fix_hazards(self, verbose=False):
        total = 0
        while True:
            preds, lab = self._preds()
            it = self.items
            changed = False
            for i, c in enumerate(it):
                if c.cls in ('label', 'nop', 'wait', 'end', 'other'):
                    continue
                worst = 0
                stack = [(p, 0) for p in preds[i]]
                seen = {}
                while stack:
                    j, dist = stack.pop()
                    if dist >= 14:
                        continue
                    if seen.get(j, 99) <= dist:
                        continue
                    seen[j] = dist
                    p = it[j]
                    if p.cls == 'label':
                        stack += [(q, dist) for q in preds[j]]
                        continue
                    n = need_states(p, c)
                    if n > dist:
                        worst = max(worst, n - dist)
                    stack += [(q, dist + p.states) for q in preds[j]]
                if worst:
                    if verbose:
                        print(f'{self.name}: nop {worst} before: {c.text}', file=sys.stderr)
                    it.insert(i, Ins(f's_nop {worst - 1}'))
                    total += worst
                    changed = True
                    break
            if not changed:
                return total

    def check_waits(self, maxback=2):
        preds, lab = self._preds()
        it = self.items
        errs = set()
        sys.setrecursionlimit(100000)
        stack = [(0, (), (), ())]
        seen = set()
        while stack:
            pc, vm, lg, bc = stack.pop()
            vm, lg, bc = list(vm), list(lg), dict(bc)
            while pc < len(it):
                x = it[pc]
                if x.cls == 'label':
                    key = (pc, tuple(vm), tuple(lg), tuple(sorted(bc.items())))
                    if key in seen:
                        break
                    seen.add(key)
                    pc += 1
                    continue
                if x.cls == 'end':
                    break
                if x.cls == 'wait':
                    if x.vm is not None and len(vm) > x.vm:
                        vm = vm[len(vm) - x.vm:] if x.vm else []
                    if x.lgkm is not None:
                        if x.lgkm == 0:
                            lg = []
                        elif not any(k == 'smem' for k, _ in lg):
                            if len(lg) > x.lgkm:
                                lg = lg[len(lg) - x.lgkm:]
                    pc += 1
                    continue
                use = x.rds | x.wrs
                if 'nocheck' in x.text:
                    use = set()
                for k, regs in vm + lg:
                    if use & set(regs):
                        if x.cls == k and not (x.rds & set(regs)) and k != 'smem':
                            continue
                        errs.add((pc, x.text))
                if x.cls in ('vload', 'vstore', 'dma'):
                    vm.append((x.cls, tuple(x.wr)))
                    vm = vm[-64:]
                elif x.cls in ('dsread', 'dswrite', 'smem'):
                    lg.append((x.cls, tuple(x.wr)))
                    if len(lg) > 40:
                        lg = lg[-40:]
                if x.cls == 'branch':
                    t = lab[x.target]
                    back = t <= pc
                    can = True
                    nb = dict(bc)
                    if back:
                        nb[pc] = nb.get(pc, 0) + 1
                        can = nb[pc] <= maxback
                    if x.op == 's_branch':
                        if not can:
                            break
                        pc, bc = t, nb
                        continue
                    if can:
                        stack.append((t, tuple(vm), tuple(lg), tuple(nb.items())))
                pc += 1
        return sorted(errs)

    def text(self):
        out = []
        for x in self.items:
            out.append(f'{x.name}:' if x.cls == 'label' else '    ' + x.text)
        return '\n'.join(out)

    def max_regs(self):
        mv = ma = ms = -1
        for x in self.items:
            if x.cls == 'label':
                continue
            for k, n in list(x.rds | x.wrs):
                if k == 'v':
                    mv = max(mv, n)
                elif k == 'a':
                    ma = max(ma, n)
                elif k == 's' and n < 106:
                    ms = max(ms, n)
        return mv + 1, ma + 1, ms + 1


def build_file(header_comment, kernels):
    out = [header_comment.rstrip('\n')]
    for k, grid, block, lds in kernels:
        out.append(f'; @launch kernel={k.name} grid=({grid},1,1) block=({block},1,1) lds={lds}')
    out.append('.amdgcn_target "amdgcn-amd-amdhsa--gfx950"')
    out.append('.text')
    done = []
    for k, *_ in kernels:
        if k in done:
            continue
        done.append(k)
        out.append(f'.globl {k.name}')
        out.append('.p2align 8')
        out.append(f'.type {k.name},@function')
        out.append(f'{k.name}:')
        out.append(k.text())
    out.append('code_end_label:')
    out.append('.section .rodata,"a"')
    for k in done:
        mv, ma, ms = k.max_regs()
        acc = max(4, (mv + 3) // 4 * 4)
        nfv = acc + ma if ma else mv
        nfv = max(nfv, getattr(k, 'min_vgpr', 0))
        out.append('.p2align 6')
        out.append(f'.amdhsa_kernel {k.name}')
        out.append(f'  .amdhsa_next_free_vgpr {nfv}')
        out.append(f'  .amdhsa_next_free_sgpr {max(ms, 16)}')
        out.append(f'  .amdhsa_accum_offset {acc}')
        out.append('  .amdhsa_group_segment_fixed_size 0')
        out.append('  .amdhsa_kernarg_size 104')
        out.append('  .amdhsa_user_sgpr_count 2')
        out.append('  .amdhsa_user_sgpr_kernarg_segment_ptr 1')
        out.append('  .amdhsa_system_sgpr_workgroup_id_x 1')
        out.append('.end_amdhsa_kernel')
    return '\n'.join(out) + '\n'
```

```python
from asmlib import *
import math

NAME = 'adaLN_cond__grouped_kv_mqa__dense_activation_silu__prompt'
A_X, A_WQ, A_WK, A_WV, A_WO, B_X, B_W1, B_W2, A_C, A_WMOD, A_OUT, A_DBG, A_WS = [8 * i for i in range(13)]

WS = {}
def _ws(name, off, size):
    WS[name] = (off, size)
_ws('XNF', 0x000000, 0x200000)
_ws('WQKV', 0x200000, 17 * 34 * 1024)
_ws('MOD', 0x2A0000, 2048 * 4)
_ws('QF', 0x300000, 0x200000)
_ws('KVF', 0x500000, 0x20000)
_ws('NRM', 0x520000, 512 + 4096)
_ws('WOF', 0x600000, 0x80000)
_ws('W1F', 0x700000, 17 * 112 * 1024)
_ws('W2F', 0x900000, 56 * 32 * 1024)
_ws('X1F', 0xB00000, 0x200000)
_ws('XN2F', 0xD00000, 0x200000)
_ws('HF', 0x1000000, 128 * 56 * 1024)

LOG2E = 1.4426950408889634
QS = 0.25 * LOG2E

import struct
def f32bits(x):
    return '0x%08x' % struct.unpack('<I', struct.pack('<f', x))[0]

def vr(a, n):
    return f'v[{a}:{a + n - 1}]' if n > 1 else f'v{a}'
def ar(a, n):
    return f'a[{a}:{a + n - 1}]' if n > 1 else f'a{a}'
def sr(a, n):
    return f's[{a}:{a + n - 1}]' if n > 1 else f's{a}'

def srd_arg_load(k, s, argoff):
    k(f's_load_dwordx2 {sr(s, 2)}, s[0:1], {argoff}')

def srd_fin(k, s, size):
    k(f's_mov_b32 s{s + 2}, {size}')
    k(f's_mov_b32 s{s + 3}, 0x20000')

def srd_ws(k, s, wsreg, name):
    off, size = WS[name]
    k(f's_add_u32 s{s}, s{wsreg}, {off}')
    k(f's_addc_u32 s{s + 1}, s{wsreg + 1}, 0')
    srd_fin(k, s, size)

def unpack(k, dlo, dhi, src):
    k(f'v_lshlrev_b32 v{dlo}, 16, v{src}')
    k(f'v_and_b32 v{dhi}, 0xffff0000, v{src}')


def ln_finish(k, vS, vQ, a, b):
    k(f'''
    v_mul_f32 v{vS}, {f32bits(1.0 / 512)}, v{vS}      ; mean
    v_mul_f32 v{vQ}, {f32bits(1.0 / 512)}, v{vQ}      ; E[x^2]
    v_fma_f32 v{vQ}, -v{vS}, v{vS}, v{vQ}   ; var
    v_max_f32 v{vQ}, 0, v{vQ}
    v_cvt_pk_bf16_f32 v{vQ}, v{vQ}, v{vS}
    v_and_b32 v{vS}, 0xffff0000, v{vQ}
    v_lshlrev_b32 v{vQ}, 16, v{vQ}
    v_add_f32 v{vQ}, {f32bits(1e-5)}, v{vQ}
    v_cvt_pk_bf16_f32 v{vQ}, v{vQ}, v{vQ}
    v_lshlrev_b32 v{vQ}, 16, v{vQ}
    v_sqrt_f32 v{vQ}, v{vQ}
    v_cvt_pk_bf16_f32 v{vQ}, v{vQ}, v{vQ}
    v_lshlrev_b32 v{vQ}, 16, v{vQ}
    v_rcp_f32 v{a}, v{vQ}
    v_mul_f32 v{b}, -v{vS}, v{a}
    ''')
```

```python
import sys, importlib
from common import *
import k0, k1

HEADER = '; adaLN + MQA attention + SiLU FFN block, multi-kernel pipeline (generated by own generator)'

def kernels(upto=99):
    ks = []
    ks.append((k0.gen_k0(), 256, 256, 24576))
    ks.append((k1.gen_k1(), 288, 256, 4 * 17 * 1024))
    try:
        import k2
        ks.append(k2.entry())
        import k3
        ks.append(k3.entry())
        import k4
        ks.append(k4.entry())
    except ImportError as e:
        print('partial build:', e, file=sys.stderr)
    return ks[:upto]

def main(out):
    ks = kernels()
    for k, *_ in ks:
        n = k.fix_hazards(verbose='-v' in sys.argv)
        errs = k.check_waits()
        print(k.name, 'instr', sum(1 for x in k.items if x.cls != 'label'), 'nops', n, 'regs', k.max_regs(), file=sys.stderr)
        for e in errs:
            print('  WAIT PROBLEM', e, file=sys.stderr)
    if os.environ.get('DUP'):
        ks = [ks[int(c)] for c in os.environ['DUP']]
    open(out, 'w').write(build_file(HEADER, ks))

if __name__ == '__main__':
    main(sys.argv[1] if len(sys.argv) > 1 and not sys.argv[1].startswith('-') else f'cdna_kernels/{NAME}.s')
```

```python
from common import *

def gen_k0():
    k = Kern('k0_prep_kernel')
    L_LN, L_END, L_G0, L_AFTERDMA, L_G1, L_SA, L_NOKV, L_NOKV2, L_KVDMA = [k.newlabel(x) for x in
        ('ln', 'end', 'g0', 'afterdma', 'g1', 'sa', 'nokv', 'nokv2', 'kvdma')]
    PART, SV, WT, KVT = 0, 2048, 4096, 4096 + 16384
    k(f'''
    s_cmp_ge_u32 s2, 256
    s_cbranch_scc1 {L_END}
    s_load_dwordx2 s[4:5], s[0:1], {A_WS}
    v_lshrrev_b32 v1, 6, v0
    v_and_b32 v2, 63, v0
    v_readfirstlane_b32 s3, v1
    s_cmp_ge_u32 s2, 128
    s_cbranch_scc1 {L_LN}
    ''')
    SC, SWM, SWQ, SKV, SOUT = 8, 12, 16, 20, 24
    srd_arg_load(k, SC, A_C)
    srd_arg_load(k, SWM, A_WMOD)
    srd_arg_load(k, SWQ, A_WQ)
    k(f's_load_dwordx4 s[28:31], s[0:1], {A_WK}')
    srd_fin(k, SC, 1024)
    srd_fin(k, SWM, 512 * 6144)
    srd_fin(k, SWQ, 512 * 1024)
    k(f'''
    v_lshrrev_b32 v3, 2, v0            ; rg
    v_and_b32 v4, 3, v0                ; ch
    v_mul_u32_u24 v5, {8 * 6144}, v3
    v_lshl_add_u32 v5, v4, 4, v5
    v_lshlrev_b32 v6, 4, v3            ; c voffset
    s_and_b32 s32, s2, 7               ; x
    s_lshr_b32 s33, s2, 3              ; y (0..15)
    s_cmp_ge_u32 s2, 64
    s_cbranch_scc1 {L_G0}
    s_lshr_b32 s34, s33, 2
    s_and_b32 s35, s33, 1
    s_lshl_b32 s36, s32, 1
    s_add_u32 s36, s36, s35            ; ks
    s_lshr_b32 s37, s33, 1
    s_and_b32 s37, s37, 1              ; half
    s_lshl_b32 s38, s36, 6
    s_cmp_eq_u32 s34, 0
    s_cselect_b32 s39, 1024, 0
    s_add_u32 s38, s38, s39            ; colbase*2
    v_lshrrev_b32 v7, 5, v2
    v_and_b32 v8, 31, v2
    v_lshlrev_b32 v7, 10, v7
    v_lshl_add_u32 v7, v8, 4, v7
    s_lshl_b32 s40, s36, 15
    s_lshl_b32 s41, s3, 13             ; w*8 rows
    s_add_u32 s40, s40, s41
    s_lshl_b32 s41, s37, 9
    s_add_u32 s40, s40, s41            ; + half*512
    s_lshl_b32 s42, s3, 12
    s_add_u32 s42, s42, {WT}
    s_waitcnt lgkmcnt(0)
    ''')
    for i in range(4):
        k(f's_mov_b32 m0, s42')
        k(f's_add_u32 s42, s42, 1024')
        k(f'buffer_load_dwordx4 v7, s[{SWQ}:{SWQ + 3}], s40 offen lds')
        k(f's_add_u32 s40, s40, 2048')
    k(f'''
    s_cmp_eq_u32 s37, 0
    s_cbranch_scc1 {L_AFTERDMA}
    s_cmp_ge_u32 s3, 2
    s_cbranch_scc1 {L_AFTERDMA}
    s_cmp_eq_u32 s3, 0
    s_cselect_b32 s{SKV}, s28, s30
    s_cselect_b32 s{SKV + 1}, s29, s31
    ''')
    srd_fin(k, SKV, 512 * 32)
    k(f'''
    v_lshlrev_b32 v8, 4, v2
    s_lshl_b32 s40, s36, 10
    s_lshl_b32 s42, s3, 10
    s_add_u32 s42, s42, {KVT}
    s_mov_b32 m0, s42
    s_nop 0
    buffer_load_dwordx4 v8, s[{SKV}:{SKV + 3}], s40 offen lds
    s_branch {L_AFTERDMA}
    {L_G0}:
    s_sub_u32 s33, s33, 8              ; y'
    s_lshr_b32 s34, s33, 1
    s_lshl_b32 s34, s34, 3
    s_add_u32 s34, s34, s32
    s_lshl_b32 s34, s34, 1
    s_and_b32 s35, s33, 1
    s_add_u32 s36, s34, s35
    s_lshl_b32 s38, s36, 6
    s_add_u32 s38, s38, 2048           ; colbase*2
    s_mov_b32 s34, 2                   ; role G
    s_waitcnt lgkmcnt(0)
    {L_AFTERDMA}:
    buffer_load_dwordx4 v[8:11], v6, s[{SC}:{SC + 3}], 0 offen
    ''')
    W0 = 12
    for i in range(8):
        k(f'buffer_load_dwordx4 {vr(W0 + 4 * i, 4)}, v5, s[{SWM}:{SWM + 3}], s38 offen')
        if i < 7:
            k(f's_add_u32 s38, s38, 6144')
    S0 = 44
    T0 = 52
    ACC = 60
    k('s_waitcnt vmcnt(8)')
    for d in range(4):
        unpack(k, S0 + 2 * d, S0 + 2 * d + 1, 8 + d)
    for j in range(8):
        k(f'v_mul_f32 v{T0 + j}, {f32bits(-LOG2E)}, v{S0 + j}')
    for j in range(8):
        k(f'v_exp_f32 v{T0 + j}, v{T0 + j}')
    for j in range(8):
        k(f'v_add_f32 v{T0 + j}, 1.0, v{T0 + j}')
    for j in range(8):
        k(f'v_rcp_f32 v{T0 + j}, v{T0 + j}')
    for j in range(8):
        k(f'v_mul_f32 v{T0 + j}, v{S0 + j}, v{T0 + j}')
    for d in range(4):
        k(f'v_cvt_pk_bf16_f32 v{8 + d}, v{T0 + 2 * d}, v{T0 + 2 * d + 1}')
    for d in range(4):
        unpack(k, S0 + 2 * d, S0 + 2 * d + 1, 8 + d)
    for i in range(8):
        k(f's_waitcnt vmcnt({7 - i})')
        for d in range(4):
            unpack(k, T0 + 2 * d, T0 + 2 * d + 1, W0 + 4 * i + d)
        for j in range(8):
            if i == 0:
                k(f'v_mul_f32 v{ACC + j}, v{T0 + j}, v{S0}')
            else:
                k(f'v_fmac_f32 v{ACC + j}, v{T0 + j}, v{S0 + i}')
    for rot in (4, 8):
        for j in range(8):
            k(f'v_add_f32_dpp v{ACC + j}, v{ACC + j}, v{ACC + j} row_ror:{rot} row_mask:0xf bank_mask:0xf')
    k(f'''
    v_lshrrev_b32 v5, 4, v0            ; p = tid>>4
    v_lshlrev_b32 v5, 7, v5
    v_lshl_add_u32 v5, v4, 5, v5
    ds_write_b128 v5, {vr(ACC, 4)} offset:{PART}
    ds_write_b128 v5, {vr(ACC + 4, 4)} offset:{PART + 16}
    v_and_b32 v6, 31, v0
    v_lshlrev_b32 v6, 2, v6            ; col*4
    s_waitcnt lgkmcnt(0)
    s_barrier
    ''')
    for p in range(16):
        k(f'ds_read_b32 v{W0 + p}, v6 offset:{PART + p * 128}')
    k('s_waitcnt lgkmcnt(8)')
    for p in range(4):
        k(f'v_add_f32 v{W0 + p}, v{W0 + p}, v{W0 + p + 4}')
    k('s_waitcnt lgkmcnt(0)')
    for p in range(4):
        k(f'v_add_f32 v{W0 + 8 + p}, v{W0 + 8 + p}, v{W0 + p + 12}')
    for p in range(4):
        k(f'v_add_f32 v{W0 + p}, v{W0 + p}, v{W0 + p + 8}')
    k(f'''
    v_add_f32 v{W0}, v{W0}, v{W0 + 1}
    v_add_f32 v{W0 + 2}, v{W0 + 2}, v{W0 + 3}
    v_add_f32 v{W0}, v{W0}, v{W0 + 2}
    v_cvt_pk_bf16_f32 v{W0}, v{W0}, v{W0}
    v_and_b32 v{W0}, 0xffff0000, v{W0}
    s_cmp_eq_u32 s34, 2
    s_cbranch_scc1 {L_G1}
    ''')
    srd_ws(k, SOUT, 4, 'WQKV')
    k(f'''
    v_add_f32 v{W0 + 1}, 1.0, v{W0}
    v_cvt_pk_bf16_f32 v{W0 + 1}, v{W0 + 1}, v{W0 + 1}
    v_and_b32 v{W0 + 1}, 0xffff0000, v{W0 + 1}
    s_cmp_eq_u32 s34, 0
    s_cselect_b64 vcc, -1, 0
    v_cndmask_b32 v{W0}, v{W0}, v{W0 + 1}, vcc
    s_lshl_b32 s40, s3, 7
    v_add_u32 v6, s40, v6
    ds_write_b32 v6, v{W0} offset:{SV}
    v_lshrrev_b32 v7, 4, v2            ; g
    v_lshl_add_u32 v8, v7, 4, s40      ; w*128 + g*16
    v_bfe_u32 v9, v2, 2, 2
    v_lshl_add_u32 v9, v7, 2, v9       ; row
    v_and_b32 v10, 3, v2
    v_lshlrev_b32 v10, 3, v10
    v_lshl_add_u32 v11, v9, 5, v10
    v_lshl_add_u32 v10, v9, 9, v10
    s_lshl_b32 s41, s3, 5
    v_add_u32 v10, s41, v10            ; + w*32
    s_lshl_b32 s41, s3, 10
    v_add_u32 v11, s41, v11
    s_waitcnt lgkmcnt(0)
    ds_read_b128 {vr(S0, 4)}, v8 offset:{SV}
    ds_read_b128 {vr(S0 + 4, 4)}, v8 offset:{SV + 64}
    ''')
    F0 = 12
    for q in range(4):
        k(f'ds_read_b64_tr_b16 {vr(F0 + 4 * q, 2)}, v10 offset:{WT + q * 128}')
        k(f'ds_read_b64_tr_b16 {vr(F0 + 4 * q + 2, 2)}, v10 offset:{WT + q * 128 + 16 * 512}')
    k(f'ds_read_b64_tr_b16 {vr(F0 + 16, 2)}, v11 offset:{KVT}')
    k(f'ds_read_b64_tr_b16 {vr(F0 + 18, 2)}, v11 offset:{KVT + 512}')
    k(f'''
    s_cmp_lt_u32 s3, 2
    s_cselect_b32 s43, s37, 0
    s_lshl_b32 s44, s37, 4
    s_add_u32 s44, s44, s3
    s_cmp_eq_u32 s34, 1
    s_cbranch_scc1 {L_SA}
    ''')
    SQ = 32
    k(f'''
    v_lshlrev_b32 v5, 4, v2
    s_mul_i32 s45, s36, 34
    s_add_u32 s46, s45, s44
    s_lshl_b32 s46, s46, 10
    s_waitcnt lgkmcnt(0)
    ''')
    for j in range(8):
        k(f'v_mul_f32 v{SQ + j}, {f32bits(QS)}, v{S0 + j}')
    def scale_store(f, sbase, soff):
        for d in range(4):
            unpack(k, T0 + 2 * d, T0 + 2 * d + 1, f + d)
        for j in range(8):
            k(f'v_mul_f32 v{T0 + j}, v{T0 + j}, v{sbase + j}')
        for d in range(4):
            k(f'v_cvt_pk_bf16_f32 v{f + d}, v{T0 + 2 * d}, v{T0 + 2 * d + 1}')
        k(f'buffer_store_dwordx4 {vr(f, 4)}, v5, s[{SOUT}:{SOUT + 3}], {soff} offen')
    for q in range(4):
        scale_store(F0 + 4 * q, SQ, 's46')
        k('s_add_u32 s46, s46, 4096')
    k(f'''
    s_cmp_eq_u32 s43, 0
    s_cbranch_scc1 {L_END}
    s_add_u32 s46, s45, 32
    s_add_u32 s46, s46, s3
    s_lshl_b32 s46, s46, 10
    ''')
    scale_store(F0 + 16, S0, 's46')
    k('s_endpgm')
    k(f'''
    {L_SA}:
    v_and_b32 v5, 15, v2
    v_lshlrev_b32 v5, 4, v5
    s_lshr_b32 s45, s36, 2
    s_lshl_b32 s45, s45, 8
    s_and_b32 s46, s36, 3
    s_lshl_b32 s46, s46, 2
    s_add_u32 s45, s45, s46
    s_add_u32 s45, s45, {16 * 34 * 1024}
    s_lshl_b32 s46, s44, 10
    s_add_u32 s46, s46, s45
    s_waitcnt lgkmcnt(0)
    ''')
    for d in range(4):
        k(f'v_cvt_pk_bf16_f32 v{SQ + d}, v{S0 + 2 * d}, v{S0 + 2 * d + 1}')
    D0 = 68
    for q in range(5):
        k(f'v_mfma_f32_16x16x32_bf16 {vr(D0 + 4 * q, 4)}, {vr(SQ, 4)}, {vr(F0 + 4 * q, 4)}, 0')
    def bias_store(d, scale, soff):
        if scale:
            k(f'v_mul_f32 v{d}, {f32bits(QS)}, v{d}')
        k(f'v_cvt_pk_bf16_f32 v{d + 1}, v{d}, v{d}')
        k(f'v_and_b32 v{d + 1}, 0xffff0000, v{d + 1}')
        k(f'v_sub_f32 v{d + 1}, v{d}, v{d + 1}')
        k(f'v_cvt_pk_bf16_f32 v{d}, v{d}, v{d + 1}')
        k(f'buffer_store_dword v{d}, v5, s[{SOUT}:{SOUT + 3}], {soff} offen')
    for q in range(4):
        bias_store(D0 + 4 * q, True, 's46')
        k('s_add_u32 s46, s46, 4096')
    k(f'''
    s_cmp_eq_u32 s43, 0
    s_cbranch_scc1 {L_END}
    s_add_u32 s46, s3, 32
    s_lshl_b32 s46, s46, 10
    s_add_u32 s46, s46, s45
    ''')
    bias_store(D0 + 16, False, 's46')
    k('s_endpgm')
    k(f'{L_G1}:')
    srd_ws(k, SOUT, 4, 'MOD')
    k(f'''
    s_lshl_b32 s40, s36, 7
    buffer_store_dword v{W0}, v6, s[{SOUT}:{SOUT + 3}], s40 offen
    s_endpgm
    ''')
    SX = 8
    k(f'{L_LN}:')
    srd_arg_load(k, SX, A_X)
    srd_fin(k, SX, 2048 * 1024)
    X0 = 8
    k(f'''
    s_sub_u32 s32, s2, 128             ; tt
    v_and_b32 v3, 15, v2               ; t16
    v_lshrrev_b32 v4, 4, v2            ; g
    v_lshlrev_b32 v5, 10, v3
    v_lshl_add_u32 v5, v4, 3, v5
    s_lshl_b32 s33, s32, 14
    s_lshl_b32 s34, s3, 8
    s_add_u32 s34, s34, s33
    s_waitcnt lgkmcnt(0)
    ''')
    for i in range(4):
        k(f'buffer_load_dwordx2 {vr(X0 + 4 * i, 2)}, v5, s[{SX}:{SX + 3}], s34 offen offset:{i * 64}')
        k(f'buffer_load_dwordx2 {vr(X0 + 4 * i + 2, 2)}, v5, s[{SX}:{SX + 3}], s34 offen offset:{i * 64 + 32}')
    srd_ws(k, SOUT, 4, 'XNF')
    U0 = 24
    k('v_mov_b32 v6, 0')
    k('v_mov_b32 v7, 0')
    for i in range(8):
        k(f's_waitcnt vmcnt({7 - i})')
        for d in range(2):
            unpack(k, U0 + 4 * i + 2 * d, U0 + 4 * i + 2 * d + 1, X0 + 2 * i + d)
        for j in range(4):
            k(f'v_add_f32 v6, v6, v{U0 + 4 * i + j}')
            k(f'v_fmac_f32 v7, v{U0 + 4 * i + j}, v{U0 + 4 * i + j}')
    ln_stats_and_scale(k, 6, 7, tmp=56, lane=2, t16=3, wave_s=3, ldsoff=0)
    k('v_lshlrev_b32 v5, 4, v2')
    k('s_lshl_b32 s34, s3, 12')
    k('s_add_u32 s34, s34, s33')
    for i in range(4):
        for j in range(8):
            k(f'v_fma_f32 v{U0 + 8 * i + j}, v{U0 + 8 * i + j}, v56, v57')
        for d in range(4):
            k(f'v_cvt_pk_bf16_f32 v{X0 + 4 * i + d}, v{U0 + 8 * i + 2 * d}, v{U0 + 8 * i + 2 * d + 1}')
        k(f'buffer_store_dwordx4 {vr(X0 + 4 * i, 4)}, v5, s[{SOUT}:{SOUT + 3}], s34 offen offset:{i * 1024}')
    k(f'{L_END}:')
    k('s_endpgm')
    return k


def ln_stats_and_scale(k, vS, vQ, tmp, lane, t16, wave_s, ldsoff):
    a, b = tmp, tmp + 1
    k(f'''
    v_permlane32_swap_b32 v{vS}, v{vQ}
    v_add_f32 v{a}, v{vS}, v{vQ}
    v_mov_b32 v{b}, v{a}
    v_permlane16_swap_b32 v{a}, v{b}
    v_add_f32 v{a}, v{a}, v{b}
    v_lshrrev_b32 v{b}, 5, v{lane}
    v_lshlrev_b32 v{b}, 8, v{b}
    v_lshl_add_u32 v{b}, v{t16}, 4, v{b}
    s_lshl_b32 s60, s{wave_s}, 2
    v_add_u32 v{b}, s60, v{b}
    ds_write_b32 v{b}, v{a} offset:{ldsoff}
    v_lshlrev_b32 v{b}, 4, v{t16}
    s_waitcnt lgkmcnt(0)
    s_barrier
    ds_read_b128 {vr(tmp + 2, 4)}, v{b} offset:{ldsoff}
    ds_read_b128 {vr(tmp + 6, 4)}, v{b} offset:{ldsoff + 256}
    s_waitcnt lgkmcnt(0)
    v_add_f32 v{tmp + 2}, v{tmp + 2}, v{tmp + 3}
    v_add_f32 v{tmp + 6}, v{tmp + 6}, v{tmp + 7}
    v_add_f32 v{tmp + 4}, v{tmp + 4}, v{tmp + 5}
    v_add_f32 v{tmp + 8}, v{tmp + 8}, v{tmp + 9}
    v_add_f32 v{tmp + 2}, v{tmp + 2}, v{tmp + 4}
    v_add_f32 v{tmp + 6}, v{tmp + 6}, v{tmp + 8}
    v_mul_f32 v{tmp + 2}, {f32bits(1.0 / 512)}, v{tmp + 2}      ; mean
    v_mul_f32 v{tmp + 6}, {f32bits(1.0 / 512)}, v{tmp + 6}      ; E[x^2]
    v_fma_f32 v{tmp + 6}, -v{tmp + 2}, v{tmp + 2}, v{tmp + 6}   ; var
    v_max_f32 v{tmp + 6}, 0, v{tmp + 6}
    v_cvt_pk_bf16_f32 v{tmp + 6}, v{tmp + 6}, v{tmp + 2}
    v_and_b32 v{tmp + 2}, 0xffff0000, v{tmp + 6}
    v_lshlrev_b32 v{tmp + 6}, 16, v{tmp + 6}
    v_add_f32 v{tmp + 6}, {f32bits(1e-5)}, v{tmp + 6}
    v_cvt_pk_bf16_f32 v{tmp + 6}, v{tmp + 6}, v{tmp + 6}
    v_lshlrev_b32 v{tmp + 6}, 16, v{tmp + 6}
    v_sqrt_f32 v{tmp + 6}, v{tmp + 6}
    v_cvt_pk_bf16_f32 v{tmp + 6}, v{tmp + 6}, v{tmp + 6}
    v_lshlrev_b32 v{tmp + 6}, 16, v{tmp + 6}
    v_rcp_f32 v{a}, v{tmp + 6}
    v_mul_f32 v{b}, -v{tmp + 2}, v{a}
    ''')
```

```python
from common import *

def gen_k1():
    k = Kern('k1_qkv_kernel')
    L_END, L_PACK, L_V1, L_V1E, L_V2, L_V2E, L_VST, L_P2, L_P1, L_PGO, L_PNS, L_P2a, L_P2b = [k.newlabel(x) for x in
        ('end', 'pack', 'v1', 'v1e', 'v2', 'v2e', 'vst', 'p2', 'p1', 'pgo', 'pns', 'p2a', 'p2b')]
    k(f'''
    s_cmp_ge_u32 s2, 512
    s_cbranch_scc1 {L_END}
    s_load_dwordx2 s[4:5], s[0:1], {A_WS}
    v_lshrrev_b32 v1, 6, v0
    v_and_b32 v2, 63, v0
    v_readfirstlane_b32 s3, v1
    v_lshlrev_b32 v3, 4, v2            ; lane*16
    s_cmp_ge_u32 s2, 256
    s_cbranch_scc1 {L_PACK}
    s_and_b32 s32, s2, 7
    s_lshr_b32 s33, s2, 3
    s_and_b32 s34, s33, 3
    s_lshl_b32 s32, s32, 2
    s_add_u32 s32, s32, s34            ; rb
    s_lshr_b32 s33, s33, 2             ; cb
    s_lshr_b32 s34, s33, 1             ; tte
    s_and_b32 s35, s33, 1              ; kv
    s_lshl_b32 s36, s3, 12             ; w*4096
    ''')
    SX, SW, SQ, SK = 8, 12, 16, 20
    for i in range(4):
        k(f'''
        s_add_u32 s37, s34, {i}
        s_and_b32 s37, s37, 3
        s_lshl_b32 s38, s32, 2
        s_add_u32 s37, s37, s38
        s_lshl_b32 s37, s37, 14
        s_add_u32 s{40 + i}, s37, s36
        ''')
    k(f'''
    s_mul_i32 s44, s3, {4 * 34 * 1024}
    s_lshl_b32 s45, s33, 12
    s_add_u32 s45, s45, s44
    s_lshl_b32 s46, s35, 10
    s_add_u32 s46, s46, {32 * 1024}
    s_add_u32 s47, s46, {16 * 34 * 1024}
    s_add_u32 s46, s46, s44
    s_lshl_b32 s48, s33, 12
    s_add_u32 s48, s48, {16 * 34 * 1024}
    s_waitcnt lgkmcnt(0)
    ''')
    srd_ws(k, SW, 4, 'WQKV')
    srd_ws(k, SX, 4, 'XNF')
    XB, WB, BB, ACC, BD, ONE = 8, 72, 152, 172, 152, 4
    BD = 232
    ACC = 164 - 0
    BB, ACC = 152, 172
    for c in range(4):
        k(f'buffer_load_dwordx4 {vr(BB + 4 * c, 4)}, v3, s[{SW}:{SW + 3}], s48 offen offset:{c * 1024}')
    k(f'buffer_load_dwordx4 {vr(BB + 16, 4)}, v3, s[{SW}:{SW + 3}], s47 offen')
    for s in range(4):
        for c in range(4):
            k(f'buffer_load_dwordx4 {vr(XB + 16 * s + 4 * c, 4)}, v3, s[{SX}:{SX + 3}], s{40 + c} offen offset:{s * 1024}')
            k(f'buffer_load_dwordx4 {vr(WB + 20 * s + 4 * c, 4)}, v3, s[{SW}:{SW + 3}], s45 offen offset:{c * 1024}')
        k(f'buffer_load_dwordx4 {vr(WB + 20 * s + 16, 4)}, v3, s[{SW}:{SW + 3}], s46 offen')
        if s < 3:
            k(f's_add_u32 s45, s45, {34 * 1024}')
            k(f's_add_u32 s46, s46, {34 * 1024}')
    for d in range(4):
        k(f'v_mov_b32 v{ONE + d}, 0x3e803e80')
    srd_ws(k, SQ, 4, 'QF')
    k('s_waitcnt vmcnt(36)')
    for c in range(4):
        k(f'v_mfma_f32_16x16x32_bf16 {vr(240 + 4 * c, 4)}, {vr(BB + 4 * c, 4)}, {vr(ONE, 4)}, 0')
    EX = ACC + 64
    k(f'''
    s_cmp_eq_u32 s35, 1
    s_cbranch_scc1 {L_V1}
    v_mfma_f32_16x16x32_bf16 {vr(EX, 4)}, {vr(BB + 16, 4)}, {vr(ONE, 4)}, 0
    s_branch {L_V1E}
    {L_V1}:
    v_mfma_f32_16x16x32_bf16 {vr(EX, 4)}, {vr(ONE, 4)}, {vr(BB + 16, 4)}, 0
    {L_V1E}:
    ''')
    for s in range(4):
        k(f's_waitcnt vmcnt({27 - 9 * s + 1})')
        for i in range(4):
            for c in range(4):
                C = vr(240 + 4 * c, 4) if s == 0 else vr(ACC + 16 * i + 4 * c, 4)
                k(f'v_mfma_f32_16x16x32_bf16 {vr(ACC + 16 * i + 4 * c, 4)}, {vr(WB + 20 * s + 4 * c, 4)}, {vr(XB + 16 * s + 4 * i, 4)}, {C}')
    k(f'''
    s_waitcnt vmcnt(0)
    s_cmp_eq_u32 s35, 1
    s_cbranch_scc1 {L_V2}
    ''')
    for s in range(4):
        k(f'v_mfma_f32_16x16x32_bf16 {vr(EX, 4)}, {vr(WB + 20 * s + 16, 4)}, {vr(XB + 16 * s, 4)}, {vr(EX, 4)}')
    k(f's_branch {L_V2E}')
    k(f'{L_V2}:')
    for s in range(4):
        k(f'v_mfma_f32_16x16x32_bf16 {vr(EX, 4)}, {vr(XB + 16 * s, 4)}, {vr(WB + 20 * s + 16, 4)}, {vr(EX, 4)}')
    k(f'{L_V2E}:')
    k(f'''
    s_lshl_b32 s37, s3, 14
    v_add_u32 v4, s37, v3
    v_add_u32 v5, s36, v3
    v_add_u32 v3, 0x10000, v3
    s_lshl_b32 s37, s3, 10
    v_add_u32 v6, s37, v3
    ''')
    for t in range(16):
        k(f'ds_write_b128 v4, {vr(ACC + 4 * t, 4)} offset:{t * 1024}')
    k(f'ds_write_b128 v6, {vr(ACC + 64, 4)}')
    k(f'''
    v_and_b32 v6, 15, v2               ; t16
    v_lshrrev_b32 v7, 4, v2            ; g
    v_lshrrev_b32 v72, 3, v6
    v_lshlrev_b32 v72, 13, v72
    v_lshrrev_b32 v73, 1, v7
    v_lshl_add_u32 v72, v73, 9, v72
    v_and_b32 v73, 7, v6
    v_lshl_add_u32 v72, v73, 4, v72
    v_and_b32 v73, 1, v7
    v_lshl_add_u32 v72, v73, 3, v72
    s_add_u32 s37, s34, s3
    s_and_b32 s37, s37, 3
    s_lshl_b32 s38, s32, 2
    s_add_u32 s37, s37, s38            ; ta
    s_lshl_b32 s37, s37, 14
    s_lshl_b32 s39, s33, 10
    s_add_u32 s37, s37, s39            ; Q soffset
    s_add_u32 s38, s38, s34            ; tae
    s_waitcnt lgkmcnt(0)
    s_barrier
    ''')
    R = 8
    for c in range(4):
        for p in range(4):
            k(f'ds_read_b128 {vr(R + 16 * c + 4 * p, 4)}, v5 offset:{p * 16 * 1024 + c * 1024}')
    def sum4(r):
        for e in range(4):
            k(f'v_add_f32 v{r + e}, v{r + e}, v{r + 4 + e}')
        for e in range(4):
            k(f'v_add_f32 v{r + 8 + e}, v{r + 8 + e}, v{r + 12 + e}')
        for e in range(4):
            k(f'v_add_f32 v{r + e}, v{r + e}, v{r + 8 + e}')
        k(f'v_cvt_pk_bf16_f32 v{r + 4}, v{r}, v{r + 1}')
        k(f'v_cvt_pk_bf16_f32 v{r + 5}, v{r + 2}, v{r + 3}')
    srd_ws(k, SK + 4, 4, 'NRM')
    for c in range(4):
        k(f's_waitcnt lgkmcnt({12 - 4 * c})')
        r = R + 16 * c
        sum4(r)
        k(f'buffer_store_dwordx2 {vr(r + 4, 2)}, v72, s[{SQ}:{SQ + 3}], s37 offen offset:{c * 128}')
        k(f'v_mul_f32 v{r + 8}, v{r}, v{r}')
        for e in range(1, 4):
            k(f'v_fmac_f32 v{r + 8}, v{r + e}, v{r + e}')
    def lane_reduce(a, b):
        k(f'''
        v_mov_b32 v{b}, v{a}
        v_permlane32_swap_b32 v{a}, v{b}
        v_add_f32 v{a}, v{a}, v{b}
        v_mov_b32 v{b}, v{a}
        v_permlane16_swap_b32 v{a}, v{b}
        v_add_f32 v{a}, v{a}, v{b}
        v_max_f32_dpp v{a}, v{a}, v{a} row_ror:8 row_mask:0xf bank_mask:0xf
        v_max_f32_dpp v{a}, v{a}, v{a} row_ror:4 row_mask:0xf bank_mask:0xf
        v_max_f32_dpp v{a}, v{a}, v{a} row_ror:2 row_mask:0xf bank_mask:0xf
        v_max_f32_dpp v{a}, v{a}, v{a} row_ror:1 row_mask:0xf bank_mask:0xf
        ''')
    k(f'''
    v_max3_f32 v{R + 8}, v{R + 8}, v{R + 24}, v{R + 40}
    v_max_f32 v{R + 8}, v{R + 8}, v{R + 56}
    v_mov_b32 v73, 0
    s_lshr_b32 s37, s37, 14            ; ta
    s_lshl_b32 s37, s37, 3
    s_add_u32 s37, s37, s33
    s_lshl_b32 s37, s37, 2
    ''')
    lane_reduce(R + 8, R + 9)
    k(f'''
    buffer_store_dword v{R + 8}, v73, s[{SK + 4}:{SK + 7}], s37 offen offset:512
    s_cmp_lg_u32 s3, 3
    s_cbranch_scc1 {L_END}
    ''')
    R = 76
    for p in range(4):
        k(f'ds_read_b128 {vr(R + 4 * p, 4)}, v3 offset:{p * 1024}')
    srd_ws(k, SK, 4, 'KVF')
    k(f'''
    v_lshrrev_b32 v75, 1, v7           ; g>>1
    v_and_b32 v7, 1, v7                ; g&1
    s_lshr_b32 s39, s38, 1
    s_lshl_b32 s39, s39, 11            ; tile*2048
    s_and_b32 s40, s38, 1
    s_waitcnt lgkmcnt(0)
    ''')
    sum4(R)
    k(f'''
    s_cmp_eq_u32 s35, 1
    s_cbranch_scc1 {L_VST}
    ''')
    k(f'''
    v_and_b32 v72, 3, v6
    v_bfe_u32 v74, v6, 2, 1
    v_lshl_add_u32 v72, v74, 3, v72
    v_lshrrev_b32 v74, 3, v6
    v_lshl_add_u32 v72, v74, 2, v72
    v_lshlrev_b32 v72, 4, v72
    v_lshl_add_u32 v72, v75, 9, v72
    v_lshl_add_u32 v72, v7, 3, v72
    s_lshl_b32 s40, s40, 8
    s_add_u32 s39, s39, s40
    buffer_store_dwordx2 {vr(R + 4, 2)}, v72, s[{SK}:{SK + 3}], s39 offen
    ''')
    unpack(k, R, R + 1, R + 4)
    unpack(k, R + 2, R + 3, R + 5)
    k(f'''
    v_mul_f32 v{R + 8}, v{R}, v{R}
    v_fmac_f32 v{R + 8}, v{R + 1}, v{R + 1}
    v_fmac_f32 v{R + 8}, v{R + 2}, v{R + 2}
    v_fmac_f32 v{R + 8}, v{R + 3}, v{R + 3}
    s_lshl_b32 s39, s38, 2
    ''')
    lane_reduce(R + 8, R + 9)
    k(f'''
    buffer_store_dword v{R + 8}, v73, s[{SK + 4}:{SK + 7}], s39 offen
    s_endpgm
    {L_VST}:
    v_lshlrev_b32 v72, 4, v6
    v_lshl_add_u32 v72, v75, 8, v72
    v_lshl_add_u32 v72, v7, 3, v72
    s_lshl_b32 s40, s40, 9
    s_add_u32 s39, s39, s40
    buffer_store_dwordx2 {vr(R + 4, 2)}, v72, s[{SK}:{SK + 3}], s39 offen offset:1024
    s_endpgm
    ''')
    SS, SD, SM = 8, 12, 16
    k(f'''
    {L_PACK}:
    s_sub_u32 s32, s2, 256
    s_mov_b32 s45, 0
    s_movk_i32 s40, 1024
    s_cmp_ge_u32 s32, 144
    s_cbranch_scc1 {L_P1}
    s_cmp_ge_u32 s32, 32
    s_cbranch_scc1 {L_P2}
    ''')
    srd_arg_load(k, SS, A_WO)
    srd_fin(k, SS, 512 * 1024)
    k(f'''
    s_lshr_b32 s46, s32, 1
    s_and_b32 s43, s32, 1
    s_lshl_b32 s41, s46, 5
    s_add_u32 s42, s41, 16
    s_lshl_b32 s44, s32, 14
    s_waitcnt lgkmcnt(0)
    ''')
    srd_ws(k, SD, 4, 'WOF')
    k(f's_branch {L_PGO}')
    k(f'{L_P2}:')
    srd_arg_load(k, SS, B_W2)
    srd_fin(k, SS, 1792 * 1024)
    k(f'''
    s_sub_u32 s32, s32, 32
    s_lshr_b32 s46, s32, 1             ; ks 0..55
    s_and_b32 s43, s32, 1
    s_lshl_b32 s44, s32, 14
    s_mul_i32 s33, s46, 37
    s_lshr_b32 s33, s33, 8             ; c = ks/7
    s_mul_i32 s34, s33, 7
    s_sub_u32 s34, s46, s34            ; ksl
    s_mul_i32 s33, s33, 224
    s_lshl_b32 s35, s34, 5
    s_add_u32 s41, s33, s35            ; 224c + 32 ksl
    s_cmp_ge_u32 s34, 3
    s_cselect_b32 s35, 16, 0
    s_add_u32 s41, s41, s35
    s_add_u32 s42, s41, 16
    s_cmp_lg_u32 s34, 6
    s_cbranch_scc1 {L_P2a}
    s_add_u32 s41, s33, 96
    s_add_u32 s42, s33, 208
    {L_P2a}:
    s_waitcnt lgkmcnt(0)
    ''')
    srd_ws(k, SD, 4, 'W2F')
    k(f's_branch {L_PGO}')
    k(f'{L_P1}:')
    srd_arg_load(k, SS, B_W1)
    srd_fin(k, SS, 512 * 3584)
    k(f'''
    s_sub_u32 s32, s32, 144
    s_mul_i32 s46, s32, 147
    s_lshr_b32 s46, s46, 10            ; ks = q/7 (q<112)
    s_mul_i32 s33, s46, 7
    s_sub_u32 s43, s32, s33            ; cg
    s_lshl_b32 s41, s46, 5
    s_add_u32 s42, s41, 16
    s_lshl_b32 s44, s32, 14
    s_movk_i32 s40, 3584
    s_mov_b32 s45, 1
    s_waitcnt lgkmcnt(0)
    ''')
    srd_ws(k, SD, 4, 'W1F')
    k(f'{L_PGO}:')
    srd_ws(k, SM, 4, 'MOD')
    k(f'''
    s_sub_u32 s42, s42, 16
    s_cmp_lt_u32 s3, 2
    s_cselect_b32 s33, s41, s42
    s_lshl_b32 s34, s3, 3
    s_add_u32 s33, s33, s34
    s_mul_i32 s33, s33, s40
    s_lshl_b32 s34, s43, 9
    s_add_u32 s33, s33, s34            ; soffset
    s_lshl_b32 s35, s40, 1
    v_lshrrev_b32 v4, 5, v2
    v_mul_u32_u24 v4, s40, v4
    v_and_b32 v5, 31, v2
    v_lshl_add_u32 v4, v5, 4, v4
    s_lshl_b32 s36, s3, 12
    ''')
    for i in range(4):
        k(f's_mov_b32 m0, s36')
        k(f's_add_u32 s36, s36, 1024')
        k(f'buffer_load_dwordx4 v4, s[{SS}:{SS + 3}], s33 offen lds')
        k(f's_add_u32 s33, s33, s35')
    S0, B0, T0, F0, D0 = 32, 40, 48, 12, 56
    k(f'''
    v_lshrrev_b32 v7, 4, v2            ; g
    v_lshlrev_b32 v8, 4, v7
    s_lshl_b32 s33, s46, 7             ; ks*32*4
    s_and_b32 s33, s33, 0x7ff
    buffer_load_dwordx4 {vr(S0, 4)}, v8, s[{SM}:{SM + 3}], s33 offen offset:{4096 - 4096}
    ''')
    k.items.pop()
    k(f's_add_u32 s34, s33, 4096')
    k(f'buffer_load_dwordx4 {vr(S0, 4)}, v8, s[{SM}:{SM + 3}], s34 offen')
    k(f'buffer_load_dwordx4 {vr(S0 + 4, 4)}, v8, s[{SM}:{SM + 3}], s34 offen offset:64')
    k(f'buffer_load_dwordx4 {vr(B0, 4)}, v8, s[{SM}:{SM + 3}], s33 offen offset:2048')
    k(f'buffer_load_dwordx4 {vr(B0 + 4, 4)}, v8, s[{SM}:{SM + 3}], s33 offen offset:{2048 + 64}')
    k(f'''
    v_bfe_u32 v9, v2, 2, 2
    v_lshl_add_u32 v9, v7, 2, v9       ; row
    v_and_b32 v10, 3, v2
    v_lshlrev_b32 v10, 3, v10
    v_lshl_add_u32 v10, v9, 9, v10
    s_lshl_b32 s33, s3, 5
    v_add_u32 v10, s33, v10
    s_lshl_b32 s33, s3, 10
    s_add_u32 s48, s44, s33
    s_add_u32 s49, s48, 4096
    s_add_u32 s50, s48, 8192
    s_add_u32 s51, s48, 12288
    s_waitcnt vmcnt(0)
    s_barrier
    ''')
    for q in range(4):
        k(f'ds_read_b64_tr_b16 {vr(F0 + 4 * q, 2)}, v10 offset:{q * 128}')
        k(f'ds_read_b64_tr_b16 {vr(F0 + 4 * q + 2, 2)}, v10 offset:{q * 128 + 16 * 512}')
    k(f'''
    s_cmp_eq_u32 s45, 0
    s_cbranch_scc1 {L_PNS}
    ''')
    for j in range(8):
        k(f'v_add_f32 v{S0 + j}, 1.0, v{S0 + j}')
    for d in range(4):
        k(f'v_cvt_pk_bf16_f32 v{T0 + d}, v{S0 + 2 * d}, v{S0 + 2 * d + 1}')
    for d in range(4):
        unpack(k, S0 + 2 * d, S0 + 2 * d + 1, T0 + d)
    for j in range(8):
        k(f'v_mul_f32 v{S0 + j}, {f32bits(LOG2E)}, v{S0 + j}')
    for d in range(4):
        k(f'v_cvt_pk_bf16_f32 v{B0 + d}, v{B0 + 2 * d}, v{B0 + 2 * d + 1}')
    k('s_waitcnt lgkmcnt(0)')
    for q in range(4):
        k(f'v_mfma_f32_16x16x32_bf16 {vr(D0 + 4 * q, 4)}, {vr(B0, 4)}, {vr(F0 + 4 * q, 4)}, 0')
    for q in range(4):
        f = F0 + 4 * q
        for d in range(4):
            unpack(k, T0 + 2 * d, T0 + 2 * d + 1, f + d)
        for j in range(8):
            k(f'v_mul_f32 v{T0 + j}, v{T0 + j}, v{S0 + j}')
        for d in range(4):
            k(f'v_cvt_pk_bf16_f32 v{f + d}, v{T0 + 2 * d}, v{T0 + 2 * d + 1}')
    k(f'''
    v_and_b32 v5, 15, v2
    v_lshlrev_b32 v5, 4, v5
    s_lshr_b32 s33, s46, 2
    s_lshl_b32 s33, s33, 8
    s_and_b32 s34, s46, 3
    s_lshl_b32 s34, s34, 2
    s_add_u32 s33, s33, s34
    s_lshl_b32 s34, s43, 4
    s_add_u32 s34, s34, s3
    s_mul_i32 s35, s46, 7168
    s_add_u32 s35, s35, 7168
    ''')
    for q in range(4):
        d = D0 + 4 * q
        k(f'''
        s_mul_i32 s36, s34, 147
        s_lshr_b32 s36, s36, 10        ; fb
        s_mul_i32 s36, s36, 112
        s_add_u32 s36, s36, s34        ; fb*119 + f
        s_lshl_b32 s36, s36, 10
        s_add_u32 s{48 + q}, s36, s35
        s_add_u32 s36, s36, s33
        s_add_u32 s34, s34, 4
        ''')
        k(f'v_mul_f32 v{d}, {f32bits(LOG2E)}, v{d}')
        k(f'v_cvt_pk_bf16_f32 v{d + 1}, v{d}, v{d}')
        k(f'v_and_b32 v{d + 1}, 0xffff0000, v{d + 1}')
        k(f'v_sub_f32 v{d + 1}, v{d}, v{d + 1}')
        k(f'v_cvt_pk_bf16_f32 v{d}, v{d}, v{d + 1}')
        k(f'buffer_store_dword v{d}, v5, s[{SD}:{SD + 3}], s36 offen')
    k(f'{L_PNS}:')
    k('s_waitcnt lgkmcnt(0)')
    for q in range(4):
        k(f'buffer_store_dwordx4 {vr(F0 + 4 * q, 4)}, v3, s[{SD}:{SD + 3}], s{48 + q} offen')
    k(f'{L_END}:')
    k('s_endpgm')
    return k
```

```python
from common import *

PAR = 32768
PBO, PBL, OB = 0, 16384, 17408
XS, GA, FLAG, LNS = 20480, 28672, 30720, 30976
MT, QS_ = PAR + 20480, 61440
LDS_BYTES = 61440 + 8192 + 1024

def gen_k2():
    k = Kern('k2_attn_kernel')
    L = lambda n: k.newlabel(n)
    L_END, L_MAIN, L_LOOP, L_FB = L('end'), L('main'), L('loop'), L('fb')
    S = [10, 26]
    P, C, Q, ACC, T = 42, 50, 66, 70, 86
    AK, AV, AO, AW = 0, 32, 96, 112
    SW, SX = 8, 12
    sW, sJ, sTHR, sMODE, sWO, sONE, sLIM = 3, 16, 17, 18, 19, 20, 21
    sMASK, sBAD, sTMP = 22, 24, 26
    sG8 = 28
    k(f'''
    s_cmp_ge_u32 s2, 256
    s_cbranch_scc1 {L_END}
    s_load_dwordx2 s[{SW}:{SW + 1}], s[0:1], {A_WS}
    s_load_dwordx2 s[{SX}:{SX + 1}], s[0:1], {A_X}
    v_lshrrev_b32 v1, 6, v0
    v_and_b32 v0, 63, v0               ; lane
    v_readfirstlane_b32 s{sW}, v1
    v_lshlrev_b32 v1, 4, v0            ; lane*16
    v_lshlrev_b32 v2, 3, v0            ; lane*8
    v_and_b32 v3, 7, v0
    v_lshlrev_b32 v4, 2, v3            ; (lane&7)*4
    v_lshrrev_b32 v5, 5, v0            ; hh
    v_and_b32 v6, 15, v0
    v_lshlrev_b32 v6, 4, v6
    v_lshl_add_u32 v6, v5, 8, v6       ; V voffset
    v_lshrrev_b32 v7, 3, v0
    v_lshlrev_b32 v7, 10, v7
    v_lshl_add_u32 v7, v3, 4, v7
    v_lshlrev_b32 v8, 2, v0            ; lane*4
    s_mov_b32 s{SW + 2}, 0x2000000
    s_mov_b32 s{SW + 3}, 0x20000
    s_mov_b32 s{SX + 2}, {2048 * 1024}
    s_mov_b32 s{SX + 3}, 0x20000
    s_mov_b32 s{sMASK}, 0xffff
    s_mov_b32 s{sMASK + 1}, 0xffff
    s_mov_b32 s{sONE}, 0x3f803f80
    s_mov_b32 s{sLIM}, {f32bits(2.0 ** -90)}
    s_mov_b32 s{sMODE}, 0
    s_lshl_b32 s{sG8}, s2, 13
    s_lshr_b32 s30, s2, 1
    s_lshl_b32 s30, s30, 5
    s_add_u32 s30, s30, {WS['NRM'][0] + 512}
    s_mov_b32 s31, {WS['NRM'][0]}
    s_add_u32 s32, s{sG8}, {WS['QF'][0]}
    s_lshl_b32 s33, s{sW}, 10          ; w*1024
    s_add_u32 s34, s32, s33
    s_add_u32 s35, s33, {QS_}
    s_mov_b32 m0, s35
    s_lshl_b32 s36, s{sW}, 14
    s_add_u32 s36, s36, {WS['KVF'][0]}
    s_cmp_lt_u32 s{sW}, 4
    s_cselect_b32 s{sTHR}, 1, 100
    s_waitcnt lgkmcnt(0)
    buffer_load_dwordx2 {vr(T, 2)}, v2, s[{SW}:{SW + 3}], s31 offen
    buffer_load_dword v{T + 2}, v4, s[{SW}:{SW + 3}], s30 offen
    buffer_load_dwordx4 {vr(Q, 4)}, v1, s[{SW}:{SW + 3}], s32 offen
    buffer_load_dwordx4 {ar(AK, 4)}, v1, s[{SW}:{SW + 3}], s36 offen
    buffer_load_dwordx4 v1, s[{SW}:{SW + 3}], s34 offen lds
    ''')
    for t in range(8):
        if t < 7:
            k(f'buffer_load_dwordx4 {ar(AK + 4 * (t + 1), 4)}, v1, s[{SW}:{SW + 3}], s36 offen offset:2048')
        k(f's_mov_b64 exec, s[{sMASK}:{sMASK + 1}]')
        k(f'buffer_load_dwordx4 {ar(AV + 8 * t, 4)}, v6, s[{SW}:{SW + 3}], s36 offen offset:1024')
        k(f'buffer_load_dwordx4 {ar(AV + 8 * t + 4, 4)}, v6, s[{SW}:{SW + 3}], s36 offen offset:1536')
        k(f's_mov_b64 exec, -1')
        k(f's_add_u32 s36, s36, 2048')
    k(f'''
    s_add_u32 s35, s33, {XS}
    s_mov_b32 m0, s35
    s_lshl_b32 s36, s{sW}, 7
    s_add_u32 s36, s36, s{sG8}
    buffer_load_dwordx4 v7, s[{SX}:{SX + 3}], s36 offen lds
    s_lshl_b32 s36, s{sW}, 8
    s_add_u32 s35, s36, {GA}
    s_mov_b32 m0, s35
    s_add_u32 s36, s36, {WS['MOD'][0]}
    buffer_load_dword v8, s[{SW}:{SW + 3}], s36 offen lds
    s_not_b64 exec, s[{sMASK}:{sMASK + 1}]
    ''')
    for i in range(64):
        k(f'v_accvgpr_write_b32 a{AV + i}, s{sONE} ;nocheck')
    k('s_mov_b64 exec, -1')
    k(f'''
    v_mov_b32 v9, 0
    ds_write_b32 v9, v9 offset:{FLAG}
    s_waitcnt vmcnt(28)
    v_max_f32 v{T}, v{T}, v{T + 1}
    ''')
    for rot in (8, 4, 2, 1):
        k(f'v_max_f32_dpp v{T}, v{T}, v{T} row_ror:{rot} row_mask:0xf bank_mask:0xf')
        if rot < 8:
            k(f'v_max_f32_dpp v{T + 2}, v{T + 2}, v{T + 2} row_ror:{rot} row_mask:0xf bank_mask:0xf')
    k(f'''
    v_mov_b32 v{T + 1}, v{T}
    v_permlane32_swap_b32 v{T}, v{T + 1}
    v_max_f32 v{T}, v{T}, v{T + 1}
    v_mov_b32 v{T + 1}, v{T}
    v_permlane16_swap_b32 v{T}, v{T + 1}
    v_max_f32 v{T}, v{T}, v{T + 1}
    v_mul_f32 v{T}, v{T}, v{T + 2}
    v_sqrt_f32 v{T}, v{T}
    ''')
    for i in range(16):
        k(f'v_mul_f32 v{C + i}, -1.0, v{T}')

    def load_C(tmp):
        k(f'''
        ds_read_b128 {vr(tmp, 4)}, v9
        ds_read_b128 {vr(tmp + 4, 4)}, v9 offset:16
        v_add_u32 v9, 1024, v9
        s_waitcnt lgkmcnt(0)
        v_max3_f32 v{tmp}, v{tmp}, v{tmp + 1}, v{tmp + 2}
        v_max3_f32 v{tmp + 3}, v{tmp + 3}, v{tmp + 4}, v{tmp + 5}
        v_max3_f32 v{tmp}, v{tmp}, v{tmp + 6}, v{tmp + 7}
        v_max_f32 v{tmp}, v{tmp}, v{tmp + 3}
        ''')
        for i in range(16):
            k(f'v_mul_f32 v{C + i}, -1.0, v{tmp}')

    def wo_loads(dst, regf):
        for ksl in range(2):
            for c in range(4):
                k(f'buffer_load_dwordx4 {regf(dst + 16 * ksl + 4 * c, 4)}, v1, s[{SW}:{SW + 3}], s{sWO} offen offset:{c * 1024}')
            k(f's_add_u32 s{sWO}, s{sWO}, 32768')

    k(f'''
    {L_MAIN}:
    s_lshl_b32 s{sWO}, s{sW}, 12
    s_add_u32 s{sWO}, s{sWO}, {WS['WOF'][0]}
    ''')
    wo_loads(AW, ar)
    k(f'''
    s_lshl_b32 s33, s{sW}, 11
    v_add_u32 v2, s33, v1
    v_and_b32 v3, 31, v0
    v_lshlrev_b32 v3, 5, v3
    s_lshl_b32 s33, s{sW}, 2
    v_add_u32 v3, s33, v3
    s_lshl_b32 s33, s{sW}, 9
    s_add_u32 s33, s33, {PAR}
    v_lshl_add_u32 v4, v0, 3, s33
    v_lshrrev_b32 v5, 1, v0            ; n
    v_lshlrev_b32 v8, 5, v5
    v_lshrrev_b32 v6, 4, v5            ; ksl
    v_lshlrev_b32 v6, 9, v6
    v_and_b32 v7, 7, v5
    v_lshl_add_u32 v6, v7, 4, v6
    v_bfe_u32 v7, v5, 3, 1
    v_lshl_add_u32 v6, v7, 3, v6
    v_and_b32 v7, 1, v0
    v_lshl_add_u32 v6, v7, 2, v6
    s_lshl_b32 s33, s{sW}, 7
    s_add_u32 s33, s33, {PAR}
    v_add_u32 v6, s33, v6
    v_add_u32 v5, {PAR}, v8
    v_lshrrev_b32 v7, 4, v0
    v_lshlrev_b32 v7, 3, v7
    v_and_b32 v8, 7, v0
    v_add_u32 v7, v7, v8
    v_lshlrev_b32 v7, 4, v7
    v_add_u32 v7, {PAR}, v7
    v_add_u32 v8, {QS_ + 1024}, v1     ; Q read
    s_mov_b32 s{sJ}, 0
    s_mov_b64 s[{sBAD}:{sBAD + 1}], 0
    s_mov_b64 vcc, 0
    ''')
    for i in range(16):
        k(f'v_mov_b32 v{ACC + i}, 0')
    k(f'''
    s_waitcnt vmcnt(34)
    v_mfma_f32_32x32x16_bf16 {vr(S[0], 16)}, {ar(AK, 4)}, {vr(Q, 4)}, {vr(C, 16)}
    v_exp_f32 v{S[0]}, v{S[0]}
    v_exp_f32 v{S[0] + 1}, v{S[0] + 1}
    {L_LOOP}:
    ''')
    def ex(X, a, b):
        for i in range(a, b):
            k(f'v_exp_f32 v{X + i}, v{X + i}')
    def cv(X, a, b):
        for i in range(a, b):
            k(f'v_cvt_pk_bf16_f32 v{P + i}, v{X + 2 * i}, v{X + 2 * i + 1}')
    def pb_write():
        k(f'''
        ds_write_b128 v2, {ar(AO, 4)} offset:{PBO}
        ds_write_b128 v2, {ar(AO + 4, 4)} offset:{PBO + 1024}
        ds_write_b32 v3, a{AO + 8} offset:{PBL}
        ''')
    def red_reads():
        for p in range(8):
            k(f'ds_read_b64 {vr(T + 2 * p, 2)}, v4 offset:{PBO + p * 2048}')
        k(f'ds_read_b128 {vr(T + 16, 4)}, v5 offset:{PBL}')
        k(f'ds_read_b128 {vr(T + 20, 4)}, v5 offset:{PBL + 16}')
    def red_calc():
        pk = lambda a, b: k(f'v_pk_add_f32 {vr(T + a, 2)}, {vr(T + a, 2)}, {vr(T + b, 2)}')
        k('s_waitcnt lgkmcnt(0)')
        pk(16, 18); pk(20, 22); pk(0, 2); pk(16, 20); pk(4, 6); pk(8, 10)
        k(f'v_add_f32 v{T + 16}, v{T + 16}, v{T + 17}')
        pk(12, 14)
        k(f'v_rcp_f32 v{T + 17}, v{T + 16}')
        pk(0, 4); pk(8, 12)
        k(f'v_cmp_nge_f32 s[{sTMP}:{sTMP + 1}], v{T + 16}, s{sLIM}')
        pk(0, 8)
        k(f'v_pk_mul_f32 {vr(T, 2)}, {vr(T, 2)}, {vr(T + 16, 2)} op_sel:[0,1] op_sel_hi:[1,1]')
        k(f's_or_b64 s[{sBAD}:{sBAD + 1}], s[{sBAD}:{sBAD + 1}], s[{sTMP}:{sTMP + 1}]')
        k(f'v_cvt_pk_bf16_f32 v{T}, v{T}, v{T + 1}')
        k(f'ds_write_b32 v6, v{T} offset:{OB}')
    def oproj(idx, wreg, B, nc=''):
        for i in idx:
            ksl, c = divmod(i, 4)
            k(f'v_mfma_f32_16x16x32_bf16 {vr(ACC + 4 * c, 4)}, {wreg(16 * ksl + 4 * c)}, {vr(B + 4 * ksl, 4)}, {vr(ACC + 4 * c, 4)} {nc}')
    aw = lambda o: ar(AW + o, 4)
    def guard_red(fn):
        l = L('nr')
        k(f's_cmp_ge_u32 s{sJ}, s{sTHR}')
        k(f's_cbranch_scc0 {l}')
        fn()
        k(f'{l}:')
    def guard_op(fn):
        l = L('no')
        k(f's_cbranch_vccz {l}')
        fn()
        k(f'{l}:')

    for t in range(8):
        X, Y = S[t & 1], S[(t + 1) & 1]
        ex(X, 2, 8)
        if t == 7:
            l = L('nc')
            k(f's_cmp_eq_u32 s{sMODE}, 0')
            k(f's_cbranch_scc1 {l}')
            load_C(T + 8)
            k(f'{l}:')
            k('s_waitcnt vmcnt(10) lgkmcnt(0)')
        else:
            k(f's_waitcnt vmcnt({33 - (3 * t + 3)})')
        k(f'v_mfma_f32_32x32x16_bf16 {vr(Y, 16)}, {ar(AK + 4 * ((t + 1) & 7), 4)}, {vr(Q, 4)}, {vr(C, 16)}')
        if t == 6:
            k(f'ds_read_b128 {vr(Q, 4)}, v8')
            k(f'v_add_u32 v8, 1024, v8')
        cv(X, 0, 4)
        ex(X, 8, 12)
        if t == 0:
            pb_write()
        Cin = '0' if t == 0 else ar(AO, 16)
        k(f'v_mfma_f32_32x32x16_bf16 {ar(AO, 16)}, {ar(AV + 8 * t, 4)}, {vr(P, 4)}, {Cin}')
        if t == 0:
            k(f'v_xor_b32 v2, {PAR}, v2')
            k(f'v_xor_b32 v3, {PAR}, v3')
        ex(X, 12, 14)
        cv(X, 4, 6)
        ex(X, 14, 16)
        if t == 0:
            k('s_waitcnt lgkmcnt(0)')
            k('s_barrier')
        if t == 5:
            guard_op(lambda: (k('s_waitcnt vmcnt(0) lgkmcnt(0)'), oproj([0, 1], aw, T)))
        if t == 6:
            guard_op(lambda: oproj([4, 5], aw, T, ';nocheck'))
        cv(X, 6, 8)
        ex(Y, 0, 2)
        k(f'v_mfma_f32_32x32x16_bf16 {ar(AO, 16)}, {ar(AV + 8 * t + 4, 4)}, {vr(P + 4, 4)}, {ar(AO, 16)}')
        if t == 0:
            guard_red(red_reads)
        if t == 2:
            guard_red(lambda: (red_calc(), k(f'v_xor_b32 v4, {PAR}, v4\nv_xor_b32 v5, {PAR}, v5\nv_xor_b32 v6, {PAR}, v6')))
        if t == 4:
            k(f'ds_read_b128 {vr(T, 4)}, v7 offset:{OB}')
            k(f'ds_read_b128 {vr(T + 4, 4)}, v7 offset:{OB + 512}')
            k(f'v_xor_b32 v7, {PAR}, v7')
        if t == 5:
            guard_op(lambda: oproj([2, 3], aw, T, ';nocheck'))
        if t == 6:
            guard_op(lambda: (oproj([6, 7], aw, T, ';nocheck'), wo_loads(AW, ar)))
    k(f'''
    s_add_u32 s{sJ}, s{sJ}, 1
    s_cmp_ge_u32 s{sJ}, 2
    s_cselect_b64 vcc, -1, 0
    s_cmp_lt_u32 s{sJ}, 8
    s_cbranch_scc1 {L_LOOP}
    ''')
    WV = S[0]
    wo_loads(WV, vr)
    pb_write()
    k(f'''
    ds_read_b128 {vr(P, 4)}, v7 offset:{OB}
    ds_read_b128 {vr(P + 4, 4)}, v7 offset:{OB + 512}
    v_xor_b32 v7, {PAR}, v7
    s_waitcnt lgkmcnt(0)
    s_barrier
    ''')
    guard_red(red_reads)
    k('s_waitcnt vmcnt(8)')
    oproj(range(8), aw, P)
    def red_tail():
        red_calc()
        l = L('ok')
        k(f'''
        s_cmp_eq_u64 s[{sBAD}:{sBAD + 1}], 0
        s_cbranch_scc1 {l}
        v_mov_b32 v{T + 1}, 0
        v_mov_b32 v{T + 2}, 1
        ds_write_b32 v{T + 1}, v{T + 2} offset:{FLAG}
        {l}:
        ''')
    guard_red(red_tail)
    XR, GR = C, C + 4
    k(f'''
    v_and_b32 v2, 7, v0                ; t
    v_bfe_u32 v3, v0, 3, 1
    v_lshrrev_b32 v4, 4, v0            ; g
    v_lshlrev_b32 v5, 7, v2
    v_lshl_add_u32 v5, v3, 6, v5
    v_lshl_add_u32 v5, v4, 3, v5
    s_lshl_b32 s33, s{sW}, 10
    v_add_u32 v5, s33, v5
    v_lshlrev_b32 v6, 7, v3
    v_lshl_add_u32 v6, v4, 4, v6
    s_lshl_b32 s33, s{sW}, 8
    v_add_u32 v6, s33, v6
    ds_read_b64 {vr(XR, 2)}, v5 offset:{XS}
    ds_read_b64 {vr(XR + 2, 2)}, v5 offset:{XS + 32}
    ds_read_b128 {vr(GR, 4)}, v6 offset:{GA}
    ds_read_b128 {vr(GR + 4, 4)}, v6 offset:{GA + 64}
    v_mov_b32 v9, 0
    s_waitcnt lgkmcnt(0)
    s_barrier
    ds_read_b128 {vr(P, 4)}, v7 offset:{OB}
    ds_read_b128 {vr(P + 4, 4)}, v7 offset:{OB + 512}
    ds_read_b32 v9, v9 offset:{FLAG}
    v_lshlrev_b32 v5, 10, v3
    v_lshl_add_u32 v5, v4, 8, v5
    v_lshl_add_u32 v5, v2, 4, v5
    s_lshr_b32 s33, s2, 1
    s_lshl_b32 s33, s33, 14
    s_lshl_b32 s34, s{sW}, 11
    s_add_u32 s33, s33, s34
    s_and_b32 s34, s2, 1
    s_lshl_b32 s34, s34, 7
    s_add_u32 s33, s33, s34
    s_add_u32 s34, s33, {WS['X1F'][0]}
    s_add_u32 s35, s33, {WS['XN2F'][0]}
    ''')
    U = T
    for d in range(4):
        unpack(k, U + 2 * d, U + 2 * d + 1, XR + d)
    k('s_waitcnt vmcnt(0) lgkmcnt(0)')
    oproj(range(8), lambda o: vr(WV + o, 4), P)
    k(f'''
    v_readfirstlane_b32 s36, v9
    s_xor_b32 s37, s{sMODE}, 1
    s_and_b32 s36, s36, s37
    s_cmp_lg_u32 s36, 0
    s_cbranch_scc1 {L_FB}
    ''')
    for i in range(8):
        k(f'v_mov_b32_dpp v{ACC + i}, v{ACC + 8 + i} quad_perm:[0,1,2,3] row_mask:0xf bank_mask:0xc')
    for i in range(8):
        k(f'v_fmac_f32 v{U + i}, v{GR + i}, v{ACC + i}')
    for d in range(4):
        k(f'v_cvt_pk_bf16_f32 v{XR + d}, v{U + 2 * d}, v{U + 2 * d + 1}')
    k(f'buffer_store_dwordx4 {vr(XR, 4)}, v5, s[{SW}:{SW + 3}], s34 offen')
    for d in range(4):
        unpack(k, U + 2 * d, U + 2 * d + 1, XR + d)
    a, b = U + 8, U + 9
    k(f'v_add_f32 v{a}, v{U}, v{U + 1}')
    k(f'v_mul_f32 v{b}, v{U}, v{U}')
    for i in range(1, 8):
        if i > 1:
            k(f'v_add_f32 v{a}, v{a}, v{U + i}')
        k(f'v_fmac_f32 v{b}, v{U + i}, v{U + i}')
    R = U + 10
    k(f'''
    v_permlane32_swap_b32 v{a}, v{b}
    v_add_f32 v{a}, v{a}, v{b}
    v_mov_b32 v{b}, v{a}
    v_permlane16_swap_b32 v{a}, v{b}
    v_add_f32 v{a}, v{a}, v{b}
    v_add_f32_dpp v{a}, v{a}, v{a} row_ror:8 row_mask:0xf bank_mask:0xf
    v_lshrrev_b32 v{b}, 5, v0
    v_lshlrev_b32 v{b}, 8, v{b}
    v_lshlrev_b32 v2, 5, v2
    s_lshl_b32 s33, s{sW}, 2
    v_add3_u32 v{b}, v{b}, v2, s33
    ds_write_b32 v{b}, v{a} offset:{LNS}
    s_waitcnt lgkmcnt(0)
    s_barrier
    ds_read_b128 {vr(ACC, 4)}, v2 offset:{LNS}
    ds_read_b128 {vr(ACC + 4, 4)}, v2 offset:{LNS + 16}
    ds_read_b128 {vr(ACC + 8, 4)}, v2 offset:{LNS + 256}
    ds_read_b128 {vr(ACC + 12, 4)}, v2 offset:{LNS + 272}
    s_waitcnt lgkmcnt(0)
    v_pk_add_f32 {vr(ACC, 2)}, {vr(ACC, 2)}, {vr(ACC + 2, 2)}
    v_pk_add_f32 {vr(ACC + 4, 2)}, {vr(ACC + 4, 2)}, {vr(ACC + 6, 2)}
    v_pk_add_f32 {vr(ACC + 8, 2)}, {vr(ACC + 8, 2)}, {vr(ACC + 10, 2)}
    v_pk_add_f32 {vr(ACC + 12, 2)}, {vr(ACC + 12, 2)}, {vr(ACC + 14, 2)}
    v_pk_add_f32 {vr(ACC, 2)}, {vr(ACC, 2)}, {vr(ACC + 4, 2)}
    v_pk_add_f32 {vr(ACC + 8, 2)}, {vr(ACC + 8, 2)}, {vr(ACC + 12, 2)}
    v_add_f32 v{ACC}, v{ACC}, v{ACC + 1}
    v_add_f32 v{ACC + 8}, v{ACC + 8}, v{ACC + 9}
    ''')
    ln_finish(k, ACC, ACC + 8, a, b)
    for i in range(8):
        k(f'v_fma_f32 v{U + i}, v{U + i}, v{a}, v{b}')
    for d in range(4):
        k(f'v_cvt_pk_bf16_f32 v{ACC + d}, v{U + 2 * d}, v{U + 2 * d + 1}')
    k(f'''
    buffer_store_dwordx4 {vr(ACC, 4)}, v5, s[{SW}:{SW + 3}], s35 offen
    {L_END}:
    s_endpgm
    ''')
    L_FBL = L('fbl')
    k(f'''
    {L_FB}:
    s_mov_b32 s{sMODE}, 1
    s_mov_b32 s{sJ}, 0
    v_add_u32 v8, {QS_}, v1
    v_and_b32 v9, 31, v0
    v_lshlrev_b32 v9, 5, v9
    v_add_u32 v9, {MT}, v9
    s_lshl_b32 s33, s{sW}, 2
    v_add_u32 v7, s33, v9
    {L_FBL}:
    ds_read_b128 {vr(Q, 4)}, v8
    v_add_u32 v8, 1024, v8
    v_mov_b32 v{T}, 0xff800000
    s_waitcnt lgkmcnt(0)
    ''')
    for t in range(8):
        k(f'v_mfma_f32_32x32x16_bf16 {vr(S[0], 16)}, {ar(AK + 4 * t, 4)}, {vr(Q, 4)}, 0')
        for i in range(8):
            k(f'v_max3_f32 v{T}, v{T}, v{S[0] + 2 * i}, v{S[0] + 2 * i + 1}')
    k(f'''
    v_mov_b32 v{T + 1}, v{T}
    v_permlane32_swap_b32 v{T}, v{T + 1}
    v_max_f32 v{T}, v{T}, v{T + 1}
    ds_write_b32 v7, v{T}
    v_add_u32 v7, 1024, v7
    s_add_u32 s{sJ}, s{sJ}, 1
    s_cmp_lt_u32 s{sJ}, 8
    s_cbranch_scc1 {L_FBL}
    v_add_u32 v8, {QS_}, v1
    ds_read_b128 {vr(Q, 4)}, v8
    s_waitcnt lgkmcnt(0)
    s_barrier
    ''')
    load_C(T + 8)
    k(f's_branch {L_MAIN}')
    return k

def entry():
    return (gen_k2(), 256, 512, LDS_BYTES)
```

```python
from common import *

LDS_BYTES = 120 * 1024

def gen_k3():
    k = Kern('k3_ffn1_kernel')
    L_END = k.newlabel('end')
    SW = 8
    sW = 3
    XB, WB, ACC, ONE = 8, 136, 192, 4
    k(f'''
    s_cmp_ge_u32 s2, 256
    s_cbranch_scc1 {L_END}
    s_load_dwordx2 s[{SW}:{SW + 1}], s[0:1], {A_WS}
    v_lshrrev_b32 v1, 6, v0
    v_and_b32 v0, 63, v0
    v_readfirstlane_b32 s{sW}, v1
    v_lshlrev_b32 v1, 4, v0            ; lane*16
    v_add_u32 v2, 0x10000, v1
    s_mov_b32 s{SW + 2}, 0x2000000
    s_mov_b32 s{SW + 3}, 0x20000
    s_and_b32 s16, s2, 7               ; xcd
    s_lshr_b32 s17, s2, 3              ; i
    s_lshr_b32 s18, s16, 1
    s_lshl_b32 s18, s18, 2
    s_and_b32 s19, s17, 3
    s_add_u32 s18, s18, s19            ; tb
    s_and_b32 s19, s16, 1
    s_lshl_b32 s19, s19, 3
    s_lshr_b32 s17, s17, 2
    s_add_u32 s19, s19, s17            ; fb
    s_lshl_b32 s20, s18, 3
    s_lshl_b32 s21, s{sW}, 1
    s_add_u32 s20, s20, s21            ; tt0
    s_lshl_b32 s21, s20, 14
    s_add_u32 s21, s21, {WS['XN2F'][0]}
    s_add_u32 s22, s21, 16384             ; tt1
    s_mul_i32 s23, s19, {119 * 1024}
    s_lshl_b32 s24, s{sW}, 10
    s_add_u32 s23, s23, s24
    s_add_u32 s23, s23, {WS['W1F'][0]}    ; W soffset
    s_mov_b32 m0, s24
    s_waitcnt lgkmcnt(0)
    ''')
    stages = [[0, 1], [2, 3], [4, 5, 6], [7, 8, 9], [10, 11, 12], [13, 14], [15, 16]]
    seq = []
    r = 0
    stage_end = []
    for st in stages:
        need = (st[-1] + 1) * 7
        xs = [(sl - 1, tt) for sl in st if sl > 0 for tt in range(2)]
        ws_ = []
        while r * 4 < need:
            ws_.append(r)
            r += 1
        while ws_ or xs:
            if ws_:
                seq.append(('w', ws_.pop(0)))
            if xs:
                seq.append(('x', xs.pop(0)))
        stage_end.append(len(seq))
    assert r == 30 and len(seq) == 62
    xoff = 0
    for kind, a in seq:
        if kind == 'w':
            k(f'buffer_load_dwordx4 v1, s[{SW}:{SW + 3}], s23 offen lds')
            k(f's_add_u32 m0, m0, 4096')
            k(f's_add_u32 s23, s23, 4096')
        else:
            ks, tt = a
            if ks // 4 != xoff:
                assert tt == 0
                k('s_add_u32 s21, s21, 4096')
                k('s_add_u32 s22, s22, 4096')
                xoff = ks // 4
            k(f'buffer_load_dwordx4 {vr(XB + 8 * ks + 4 * tt, 4)}, v1, s[{SW}:{SW + 3}], s{21 + tt} offen offset:{(ks & 3) * 1024}')
    for d in range(4):
        k(f'v_mov_b32 v{ONE + d}, 0x3f803f80')
    def wread(sl):
        for f in range(7):
            o = (sl * 7 + f) * 1024
            a, o = ('v1', o) if o < 65536 else ('v2', o - 65536)
            k(f'ds_read_b128 {vr(WB + 28 * (sl & 1) + 4 * f, 4)}, {a} offset:{o}')
    first = {st[0]: i for i, st in enumerate(stages)}
    k(f's_waitcnt vmcnt({62 - stage_end[0]})')
    k('s_barrier')
    wread(0)
    for sl in range(17):
        if sl + 1 < 17:
            if sl + 1 in first:
                k(f's_waitcnt vmcnt({62 - stage_end[first[sl + 1]]})')
                k('s_barrier')
            wread(sl + 1)
            k('s_waitcnt lgkmcnt(7)')
        else:
            k('s_waitcnt lgkmcnt(0)')
        for f in range(7):
            for tt in range(2):
                D = vr(ACC + 28 * tt + 4 * f, 4)
                A = vr(WB + 28 * (sl & 1) + 4 * f, 4)
                if sl == 0:
                    k(f'v_mfma_f32_16x16x32_bf16 {D}, {A}, {vr(ONE, 4)}, 0')
                else:
                    k(f'v_mfma_f32_16x16x32_bf16 {D}, {A}, {vr(XB + 8 * (sl - 1) + 4 * tt, 4)}, {D}')
    k(f'''
    s_mul_i32 s21, s20, {56 * 1024}
    s_lshr_b32 s22, s19, 1
    s_mul_i32 s22, s22, 7168
    s_add_u32 s21, s21, s22
    s_add_u32 s21, s21, {WS['HF'][0]}
    s_and_b32 s22, s19, 1
    s_lshl_b32 s23, s22, 3
    s_add_u32 s23, s23, s21
    s_add_u32 s23, s23, 6144
    s_mul_i32 s22, s22, 3072
    s_add_u32 s21, s21, s22
    ''')
    T = 8
    for tt in range(2):
        for grp in ((0, 1), (2, 3), (4, 5), (6,)):
            n = 4 * len(grp)
            a = ACC + 28 * tt + 4 * grp[0]
            t = T + 16 * ((tt * 4 + grp[0] // 2) % 4)
            for i in range(n):
                k(f'v_exp_f32 v{t + i}, -v{a + i}')
            for i in range(0, n, 2):
                k(f'v_pk_add_f32 {vr(t + i, 2)}, {vr(t + i, 2)}, 1.0 op_sel_hi:[1,0]')
            for i in range(n):
                k(f'v_rcp_f32 v{t + i}, v{t + i}')
            for i in range(0, n, 2):
                k(f'v_pk_mul_f32 {vr(t + i, 2)}, {vr(t + i, 2)}, {vr(a + i, 2)}')
            for i in range(0, n, 2):
                k(f'v_cvt_pk_bf16_f32 v{t + 8 + i // 2}, v{t + i}, v{t + i + 1}')
            if n == 8:
                k(f'buffer_store_dwordx4 {vr(t + 8, 4)}, v1, s[{SW}:{SW + 3}], s21 offen offset:{(grp[0] // 2) * 1024}')
            else:
                k(f'buffer_store_dwordx2 {vr(t + 8, 2)}, v1, s[{SW}:{SW + 3}], s23 offen')
        if tt == 0:
            k(f's_add_u32 s21, s21, {56 * 1024}')
            k(f's_add_u32 s23, s23, {56 * 1024}')
    k(f'{L_END}:')
    k('s_endpgm')
    return k

def entry():
    return (gen_k3(), 256, 256, LDS_BYTES)
```

```python
from common import *

TS = 1088
LDS_BYTES = 64 * TS

def gen_k4():
    k = Kern('k4_ffn2_kernel')
    L_END = k.newlabel('end')
    SW, SO = 8, 12
    sW = 3
    ACC, XR, GR = 8, 72, 80
    k(f'''
    s_cmp_ge_u32 s2, 256
    s_cbranch_scc1 {L_END}
    s_load_dwordx2 s[{SW}:{SW + 1}], s[0:1], {A_WS}
    s_load_dwordx2 s[{SO}:{SO + 1}], s[0:1], {A_OUT}
    v_lshrrev_b32 v1, 6, v0
    v_and_b32 v0, 63, v0
    v_readfirstlane_b32 s{sW}, v1
    v_lshlrev_b32 v1, 4, v0            ; lane*16
    s_mov_b32 s{SW + 2}, 0x2000000
    s_mov_b32 s{SW + 3}, 0x20000
    s_mov_b32 s{SO + 2}, {2048 * 1024}
    s_mov_b32 s{SO + 3}, 0x20000
    s_and_b32 s16, s2, 7               ; xcd
    s_lshr_b32 s17, s2, 3              ; i
    s_lshr_b32 s18, s16, 1
    s_lshl_b32 s18, s18, 3
    s_and_b32 s19, s17, 7
    s_add_u32 s18, s18, s19            ; tb (0..31)
    s_and_b32 s19, s16, 1
    s_lshl_b32 s19, s19, 2
    s_lshr_b32 s17, s17, 3
    s_add_u32 s19, s19, s17            ; cb (0..7)
    s_mul_i32 s20, s18, {4 * 56 * 1024}
    s_mul_i32 s24, s{sW}, {14 * 1024}
    s_add_u32 s20, s20, s24
    s_add_u32 s20, s20, {WS['HF'][0]}
    s_add_u32 s21, s20, {56 * 1024}
    s_add_u32 s22, s21, {56 * 1024}
    s_add_u32 s23, s22, {56 * 1024}
    s_mul_i32 s24, s{sW}, {14 * 32 * 1024}
    s_lshl_b32 s25, s19, 12
    s_add_u32 s24, s24, s25
    s_add_u32 s24, s24, {WS['W2F'][0]}
    v_lshrrev_b32 v2, 2, v0
    v_and_b32 v3, 3, v0
    v_lshrrev_b32 v4, 1, v3
    v_lshlrev_b32 v4, 10, v4
    v_lshl_add_u32 v4, v2, 4, v4
    v_and_b32 v5, 1, v3
    v_lshl_add_u32 v4, v5, 3, v4       ; x1 voffset
    v_lshlrev_b32 v5, 6, v3
    s_lshl_b32 s26, s18, 2
    s_add_u32 s26, s26, s{sW}          ; tt
    s_lshl_b32 s26, s26, 14
    s_lshl_b32 s27, s19, 11
    s_add_u32 s27, s27, s26
    s_add_u32 s27, s27, {WS['X1F'][0]}
    s_lshl_b32 s28, s19, 8
    s_add_u32 s28, s28, {WS['MOD'][0] + 6144}
    s_lshl_b32 s29, s19, 7
    s_add_u32 s29, s29, s26
    s_waitcnt lgkmcnt(0)
    ''')
    def loads(st):
        b = 32 * (st % 7)
        for i in range(4):
            k(f'buffer_load_dwordx4 {ar(b + 4 * i, 4)}, v1, s[{SW}:{SW + 3}], s{20 + i} offen offset:{(st & 3) * 1024}')
            k(f'buffer_load_dwordx4 {ar(b + 16 + 4 * i, 4)}, v1, s[{SW}:{SW + 3}], s24 offen offset:{i * 1024}')
        k('s_add_u32 s24, s24, 32768')
        if st & 3 == 3:
            for i in range(4):
                k(f's_add_u32 s{20 + i}, s{20 + i}, 4096')
    for st in range(7):
        loads(st)
    for st in range(14):
        b = 32 * (st % 7)
        if st < 7:
            k('s_waitcnt vmcnt(48)')
        elif st == 7:
            k('s_waitcnt vmcnt(48)')
        else:
            k(f's_waitcnt vmcnt({8 * (13 - st) + 8})')
        for i in range(4):
            for c in range(4):
                D = vr(ACC + 16 * i + 4 * c, 4)
                k(f'v_mfma_f32_16x16x32_bf16 {D}, {ar(b + 16 + 4 * c, 4)}, {ar(b + 4 * i, 4)}, {D if st else 0}')
        if st < 7:
            loads(st + 7)
        if st == 7:
            for g in range(4):
                k(f'buffer_load_dwordx2 {vr(XR + 2 * g, 2)}, v4, s[{SW}:{SW + 3}], s27 offen offset:{g * 256}')
                k(f'buffer_load_dwordx4 {vr(GR + 4 * g, 4)}, v5, s[{SW}:{SW + 3}], s28 offen offset:{g * 16}')
    k(f'''
    s_mul_i32 s30, s{sW}, {16 * TS}
    v_add_u32 v6, s30, v1
    v_mul_u32_u24 v7, {TS}, v3
    v_lshl_add_u32 v7, v2, 4, v7
    s_mul_i32 s30, s{sW}, {4 * TS}
    v_add_u32 v7, s30, v7
    v_lshlrev_b32 v4, 10, v2
    v_lshl_add_u32 v4, v3, 5, v4
    ''')
    for t in range(16):
        k(f'ds_write_b128 v6, {vr(ACC + 4 * t, 4)} offset:{t * TS}')
    k('s_waitcnt vmcnt(0)')
    U = 96
    for i in range(16):
        k(f'v_mul_f32 v{GR + i}, {f32bits(math.log(2.0))}, v{GR + i}')
    for d in range(8):
        unpack(k, U + 2 * d, U + 2 * d + 1, XR + d)
    k('s_waitcnt lgkmcnt(0)')
    k('s_barrier')
    R = ACC
    for g in range(4):
        for p in range(4):
            k(f'ds_read_b128 {vr(R + 16 * g + 4 * p, 4)}, v7 offset:{p * 16 * TS + g * 256}')
    for g in range(4):
        r = R + 16 * g
        k(f's_waitcnt lgkmcnt({12 - 4 * g})')
        for h in (0, 2):
            k(f'v_pk_add_f32 {vr(r + h, 2)}, {vr(r + h, 2)}, {vr(r + 4 + h, 2)}')
            k(f'v_pk_add_f32 {vr(r + 8 + h, 2)}, {vr(r + 8 + h, 2)}, {vr(r + 12 + h, 2)}')
        for h in (0, 2):
            k(f'v_pk_add_f32 {vr(r + h, 2)}, {vr(r + h, 2)}, {vr(r + 8 + h, 2)}')
        for h in (0, 2):
            k(f'v_pk_fma_f32 {vr(r + h, 2)}, {vr(r + h, 2)}, {vr(GR + 4 * g + h, 2)}, {vr(U + 4 * g + h, 2)}')
        for h in (0, 2):
            k(f'v_cvt_pk_bf16_f32 v{XR + 2 * g + h // 2}, v{r + h}, v{r + h + 1}')
        if g & 1:
            k(f'buffer_store_dwordx4 {vr(XR + 2 * g - 2, 4)}, v4, s[{SO}:{SO + 3}], s29 offen offset:{(g // 2) * 16}')
    k(f'{L_END}:')
    k('s_endpgm')
    return k

def entry():
    return (gen_k4(), 256, 256, LDS_BYTES)
```

```python
import sys
from common import *
import gen
def empty():
    k = Kern('kz_empty_kernel')
    k('s_endpgm')
    return k
ks = gen.kernels()
for k, *_ in ks:
    k.fix_hazards()
e = empty()
open('v_e5.s', 'w').write(build_file(gen.HEADER, ks + [(e, 1, 64, 0)] * 5))
open('v_e5b.s', 'w').write(build_file(gen.HEADER, ks + [(e, 256, 256, 0)] * 5))
open('v_dup.s', 'w').write(build_file(gen.HEADER, ks + ks))
```

```python
from asmlib import *
import math

NAME = 'adaLN_cond__grouped_kv_mqa__dense_activation_silu__prompt'
A_X, A_WQ, A_WK, A_WV, A_WO, B_X, B_W1, B_W2, A_C, A_WMOD, A_OUT, A_DBG, A_WS = [8 * i for i in range(13)]

WS = {}
def _ws(name, off, size):
    WS[name] = (off, size)
_ws('XNF', 0x000000, 0x200000)
_ws('WQKV', 0x200000, 17 * 34 * 1024)
_ws('MOD', 0x2A0000, 2048 * 4)
_ws('QF', 0x300000, 0x200000)
_ws('KVF', 0x500000, 0x20000)
_ws('NRM', 0x520000, 512 + 4096)
_ws('WOF', 0x600000, 0x80000)
_ws('W1F', 0x700000, 17 * 112 * 1024)
_ws('W2F', 0x900000, 56 * 32 * 1024)
_ws('X1F', 0xB00000, 0x200000)
_ws('XN2F', 0xD00000, 0x200000)
_ws('HF', 0x1000000, 128 * 56 * 1024)

LOG2E = 1.4426950408889634
QS = 0.25 * LOG2E

import struct
def f32bits(x):
    return '0x%08x' % struct.unpack('<I', struct.pack('<f', x))[0]

def vr(a, n):
    return f'v[{a}:{a + n - 1}]' if n > 1 else f'v{a}'
def ar(a, n):
    return f'a[{a}:{a + n - 1}]' if n > 1 else f'a{a}'
def sr(a, n):
    return f's[{a}:{a + n - 1}]' if n > 1 else f's{a}'

def srd_arg_load(k, s, argoff):
    k(f's_load_dwordx2 {sr(s, 2)}, s[0:1], {argoff}')

def srd_fin(k, s, size):
    k(f's_mov_b32 s{s + 2}, {size}')
    k(f's_mov_b32 s{s + 3}, 0x20000')

def srd_ws(k, s, wsreg, name):
    off, size = WS[name]
    k(f's_add_u32 s{s}, s{wsreg}, {off}')
    k(f's_addc_u32 s{s + 1}, s{wsreg + 1}, 0')
    srd_fin(k, s, size)

def unpack(k, dlo, dhi, src):
    k(f'v_lshlrev_b32 v{dlo}, 16, v{src}')
    k(f'v_and_b32 v{dhi}, 0xffff0000, v{src}')


def ln_finish(k, vS, vQ, a, b):
    k(f'''
    v_mul_f32 v{vS}, {f32bits(1.0 / 512)}, v{vS}      ; mean
    v_mul_f32 v{vQ}, {f32bits(1.0 / 512)}, v{vQ}      ; E[x^2]
    v_fma_f32 v{vQ}, -v{vS}, v{vS}, v{vQ}   ; var
    v_max_f32 v{vQ}, 0, v{vQ}
    v_cvt_pk_bf16_f32 v{vQ}, v{vQ}, v{vS}
    v_and_b32 v{vS}, 0xffff0000, v{vQ}
    v_lshlrev_b32 v{vQ}, 16, v{vQ}
    v_add_f32 v{vQ}, {f32bits(1e-5)}, v{vQ}
    v_cvt_pk_bf16_f32 v{vQ}, v{vQ}, v{vQ}
    v_lshlrev_b32 v{vQ}, 16, v{vQ}
    v_sqrt_f32 v{vQ}, v{vQ}
    v_cvt_pk_bf16_f32 v{vQ}, v{vQ}, v{vQ}
    v_lshlrev_b32 v{vQ}, 16, v{vQ}
    v_rcp_f32 v{a}, v{vQ}
    v_mul_f32 v{b}, -v{vS}, v{a}
    ''')

import os
PROF = int(os.environ.get('PROF', '0'))
PROF_OFF = 0x1800000
def stamp(k, i, real=False):
    if not PROF:
        return
    k(f's_mem{"realtime" if real else "time"} s[62:63]')
    k('s_waitcnt lgkmcnt(0)')
    k(f's_mov_b32 s{64 + i}, s62')

def stamp_flush(k, kidx, swave, n, srd=None):
    if not PROF:
        return
    stamp(k, n - 2)
    stamp(k, n - 1, True)
    k(f's_load_dwordx2 s[56:57], s[0:1], {A_WS}')
    k('s_mov_b32 s58, 0x2000000')
    k('s_mov_b32 s59, 0x20000')
    k(f's_lshl_b32 s60, s2, 3')
    k(f's_add_u32 s60, s60, s{swave}')
    k(f's_lshl_b32 s60, s60, 7')
    k(f's_add_u32 s60, s60, {PROF_OFF + kidx * 512 * 8 * 128}')
    k(f's_getreg_b32 s{64 + n}, hwreg(HW_REG_HW_ID)')
    k(f's_getreg_b32 s{65 + n}, hwreg(HW_REG_XCC_ID)')
    k('s_waitcnt vmcnt(0) lgkmcnt(0)')
    k('v_mov_b32 v0, 0')
    for i in range(n + 2):
        k(f'v_mov_b32 v1, s{64 + i}')
        k(f'buffer_store_dword v1, v0, s[56:59], s60 offen offset:{4 * i}')


def prof_exit(k, L_END, kidx, swave, n):
    if PROF:
        lf = k.newlabel('flush')
        first = True
        for i, x in enumerate(k.items):
            if x.cls == 'end':
                k.items[i] = Ins(f's_branch {lf}')
            elif x.cls == 'branch' and x.target == L_END:
                if not first:
                    k.items[i] = Ins(f'{x.op} {lf}')
                first = False
        k(f'{lf}:')
        stamp_flush(k, kidx, swave, n)
    k(f'{L_END}:')
    k('s_endpgm')
```

```python
from common import *

def gen_k0():
    k = Kern('k0_prep_kernel')
    L_LN, L_END, L_G0, L_AFTERDMA, L_G1, L_SA, L_NOKV, L_NOKV2, L_KVDMA = [k.newlabel(x) for x in
        ('ln', 'end', 'g0', 'afterdma', 'g1', 'sa', 'nokv', 'nokv2', 'kvdma')]
    PART, SV, WT, KVT = 0, 2048, 4096, 4096 + 16384
    k(f'''
    s_cmp_ge_u32 s2, 256
    s_cbranch_scc1 {L_END}
    ''')
    stamp(k, 0, True)
    stamp(k, 1)
    k(f'''
    s_load_dwordx2 s[4:5], s[0:1], {A_WS}
    v_lshrrev_b32 v1, 6, v0
    v_and_b32 v2, 63, v0
    v_readfirstlane_b32 s3, v1
    ''')
    if os.environ.get('CPF', '1') == '1':
        lp, ls = k.newlabel('pc'), k.newlabel('nopf')
        k(f'''
        s_lshr_b32 s33, s2, 3
        s_sub_u32 s33, s33, 16
        s_cmp_ge_u32 s33, 8
        s_cbranch_scc1 {ls}
        s_getpc_b64 s[28:29]
        {lp}:
        s_add_u32 s28, s28, k1_qkv_kernel-{lp}
        s_addc_u32 s29, s29, 0
        s_mov_b32 s30, code_end_label-k1_qkv_kernel
        s_mov_b32 s31, 0x20000
        s_lshl_b32 s33, s33, 12
        v_lshlrev_b32 v3, 4, v0
        buffer_load_dwordx4 v[80:83], v3, s[28:31], s33 offen
        {ls}:
        ''')
    k(f'''
    s_cmp_ge_u32 s2, 128
    s_cbranch_scc1 {L_LN}
    ''')
    SC, SWM, SWQ, SKV, SOUT = 8, 12, 16, 20, 24
    srd_arg_load(k, SC, A_C)
    srd_arg_load(k, SWM, A_WMOD)
    srd_arg_load(k, SWQ, A_WQ)
    k(f's_load_dwordx4 s[28:31], s[0:1], {A_WK}')
    srd_fin(k, SC, 1024)
    srd_fin(k, SWM, 512 * 6144)
    srd_fin(k, SWQ, 512 * 1024)
    k(f'''
    v_lshrrev_b32 v3, 2, v0            ; rg
    v_and_b32 v4, 3, v0                ; ch
    v_mul_u32_u24 v5, {8 * 6144}, v3
    v_lshl_add_u32 v5, v4, 4, v5
    v_lshlrev_b32 v6, 4, v3            ; c voffset
    s_and_b32 s32, s2, 7               ; x
    s_lshr_b32 s33, s2, 3              ; y (0..15)
    s_cmp_ge_u32 s2, 64
    s_cbranch_scc1 {L_G0}
    s_lshr_b32 s34, s33, 2
    s_and_b32 s35, s33, 1
    s_lshl_b32 s36, s32, 1
    s_add_u32 s36, s36, s35            ; ks
    s_lshr_b32 s37, s33, 1
    s_and_b32 s37, s37, 1              ; half
    s_lshl_b32 s38, s36, 6
    s_cmp_eq_u32 s34, 0
    s_cselect_b32 s39, 1024, 0
    s_add_u32 s38, s38, s39            ; colbase*2
    v_lshrrev_b32 v7, 5, v2
    v_and_b32 v8, 31, v2
    v_lshlrev_b32 v7, 10, v7
    v_lshl_add_u32 v7, v8, 4, v7
    s_lshl_b32 s40, s36, 15
    s_lshl_b32 s41, s3, 13             ; w*8 rows
    s_add_u32 s40, s40, s41
    s_lshl_b32 s41, s37, 9
    s_add_u32 s40, s40, s41            ; + half*512
    s_lshl_b32 s42, s3, 12
    s_add_u32 s42, s42, {WT}
    s_waitcnt lgkmcnt(0)
    ''')
    for i in range(4):
        k(f's_mov_b32 m0, s42')
        k(f's_add_u32 s42, s42, 1024')
        k(f'buffer_load_dwordx4 v7, s[{SWQ}:{SWQ + 3}], s40 offen lds')
        k(f's_add_u32 s40, s40, 2048')
    k(f'''
    s_cmp_eq_u32 s37, 0
    s_cbranch_scc1 {L_AFTERDMA}
    s_cmp_ge_u32 s3, 2
    s_cbranch_scc1 {L_AFTERDMA}
    s_cmp_eq_u32 s3, 0
    s_cselect_b32 s{SKV}, s28, s30
    s_cselect_b32 s{SKV + 1}, s29, s31
    ''')
    srd_fin(k, SKV, 512 * 32)
    k(f'''
    v_lshlrev_b32 v8, 4, v2
    s_lshl_b32 s40, s36, 10
    s_lshl_b32 s42, s3, 10
    s_add_u32 s42, s42, {KVT}
    s_mov_b32 m0, s42
    s_nop 0
    buffer_load_dwordx4 v8, s[{SKV}:{SKV + 3}], s40 offen lds
    s_branch {L_AFTERDMA}
    {L_G0}:
    s_sub_u32 s33, s33, 8              ; y'
    s_lshr_b32 s34, s33, 1
    s_lshl_b32 s34, s34, 3
    s_add_u32 s34, s34, s32
    s_lshl_b32 s34, s34, 1
    s_and_b32 s35, s33, 1
    s_add_u32 s36, s34, s35
    s_lshl_b32 s38, s36, 6
    s_add_u32 s38, s38, 2048           ; colbase*2
    s_mov_b32 s34, 2                   ; role G
    s_waitcnt lgkmcnt(0)
    {L_AFTERDMA}:
    ''')
    stamp(k, 2)
    k(f'''
    buffer_load_dwordx4 v[8:11], v6, s[{SC}:{SC + 3}], 0 offen
    ''')
    W0 = 12
    for i in range(8):
        k(f'buffer_load_dwordx4 {vr(W0 + 4 * i, 4)}, v5, s[{SWM}:{SWM + 3}], s38 offen')
        if i < 7:
            k(f's_add_u32 s38, s38, 6144')
    S0 = 44
    T0 = 52
    ACC = 60
    k('s_waitcnt vmcnt(8)')
    stamp(k, 3)
    for d in range(4):
        unpack(k, S0 + 2 * d, S0 + 2 * d + 1, 8 + d)
    for j in range(8):
        k(f'v_mul_f32 v{T0 + j}, {f32bits(-LOG2E)}, v{S0 + j}')
    for j in range(8):
        k(f'v_exp_f32 v{T0 + j}, v{T0 + j}')
    for j in range(8):
        k(f'v_add_f32 v{T0 + j}, 1.0, v{T0 + j}')
    for j in range(8):
        k(f'v_rcp_f32 v{T0 + j}, v{T0 + j}')
    for j in range(8):
        k(f'v_mul_f32 v{T0 + j}, v{S0 + j}, v{T0 + j}')
    for d in range(4):
        k(f'v_cvt_pk_bf16_f32 v{8 + d}, v{T0 + 2 * d}, v{T0 + 2 * d + 1}')
    for d in range(4):
        unpack(k, S0 + 2 * d, S0 + 2 * d + 1, 8 + d)
    for i in range(8):
        k(f's_waitcnt vmcnt({7 - i})')
        for d in range(4):
            unpack(k, T0 + 2 * d, T0 + 2 * d + 1, W0 + 4 * i + d)
        for j in range(8):
            if i == 0:
                k(f'v_mul_f32 v{ACC + j}, v{T0 + j}, v{S0}')
            else:
                k(f'v_fmac_f32 v{ACC + j}, v{T0 + j}, v{S0 + i}')
    stamp(k, 4)
    for rot in (4, 8):
        for j in range(8):
            k(f'v_add_f32_dpp v{ACC + j}, v{ACC + j}, v{ACC + j} row_ror:{rot} row_mask:0xf bank_mask:0xf')
    k(f'''
    v_lshrrev_b32 v5, 4, v0            ; p = tid>>4
    v_lshlrev_b32 v5, 7, v5
    v_lshl_add_u32 v5, v4, 5, v5
    ds_write_b128 v5, {vr(ACC, 4)} offset:{PART}
    ds_write_b128 v5, {vr(ACC + 4, 4)} offset:{PART + 16}
    v_and_b32 v6, 31, v0
    v_lshlrev_b32 v6, 2, v6            ; col*4
    s_waitcnt lgkmcnt(0)
    s_barrier
    ''')
    for p in range(16):
        k(f'ds_read_b32 v{W0 + p}, v6 offset:{PART + p * 128}')
    stamp(k, 5)
    k('s_waitcnt lgkmcnt(8)')
    for p in range(4):
        k(f'v_add_f32 v{W0 + p}, v{W0 + p}, v{W0 + p + 4}')
    k('s_waitcnt lgkmcnt(0)')
    for p in range(4):
        k(f'v_add_f32 v{W0 + 8 + p}, v{W0 + 8 + p}, v{W0 + p + 12}')
    for p in range(4):
        k(f'v_add_f32 v{W0 + p}, v{W0 + p}, v{W0 + p + 8}')
    k(f'''
    v_add_f32 v{W0}, v{W0}, v{W0 + 1}
    v_add_f32 v{W0 + 2}, v{W0 + 2}, v{W0 + 3}
    v_add_f32 v{W0}, v{W0}, v{W0 + 2}
    v_cvt_pk_bf16_f32 v{W0}, v{W0}, v{W0}
    v_and_b32 v{W0}, 0xffff0000, v{W0}
    s_cmp_eq_u32 s34, 2
    s_cbranch_scc1 {L_G1}
    ''')
    srd_ws(k, SOUT, 4, 'WQKV')
    k(f'''
    v_add_f32 v{W0 + 1}, 1.0, v{W0}
    v_cvt_pk_bf16_f32 v{W0 + 1}, v{W0 + 1}, v{W0 + 1}
    v_and_b32 v{W0 + 1}, 0xffff0000, v{W0 + 1}
    s_cmp_eq_u32 s34, 0
    s_cselect_b64 vcc, -1, 0
    v_cndmask_b32 v{W0}, v{W0}, v{W0 + 1}, vcc
    s_lshl_b32 s40, s3, 7
    v_add_u32 v6, s40, v6
    ds_write_b32 v6, v{W0} offset:{SV}
    v_lshrrev_b32 v7, 4, v2            ; g
    v_lshl_add_u32 v8, v7, 4, s40      ; w*128 + g*16
    v_bfe_u32 v9, v2, 2, 2
    v_lshl_add_u32 v9, v7, 2, v9       ; row
    v_and_b32 v10, 3, v2
    v_lshlrev_b32 v10, 3, v10
    v_lshl_add_u32 v11, v9, 5, v10
    v_lshl_add_u32 v10, v9, 9, v10
    s_lshl_b32 s41, s3, 5
    v_add_u32 v10, s41, v10            ; + w*32
    s_lshl_b32 s41, s3, 10
    v_add_u32 v11, s41, v11
    s_waitcnt lgkmcnt(0)
    ds_read_b128 {vr(S0, 4)}, v8 offset:{SV}
    ds_read_b128 {vr(S0 + 4, 4)}, v8 offset:{SV + 64}
    ''')
    F0 = 12
    for q in range(4):
        k(f'ds_read_b64_tr_b16 {vr(F0 + 4 * q, 2)}, v10 offset:{WT + q * 128}')
        k(f'ds_read_b64_tr_b16 {vr(F0 + 4 * q + 2, 2)}, v10 offset:{WT + q * 128 + 16 * 512}')
    k(f'ds_read_b64_tr_b16 {vr(F0 + 16, 2)}, v11 offset:{KVT}')
    k(f'ds_read_b64_tr_b16 {vr(F0 + 18, 2)}, v11 offset:{KVT + 512}')
    k(f'''
    s_cmp_lt_u32 s3, 2
    s_cselect_b32 s43, s37, 0
    s_lshl_b32 s44, s37, 4
    s_add_u32 s44, s44, s3
    s_cmp_eq_u32 s34, 1
    s_cbranch_scc1 {L_SA}
    ''')
    SQ = 32
    k(f'''
    v_lshlrev_b32 v5, 4, v2
    s_mul_i32 s45, s36, 34
    s_add_u32 s46, s45, s44
    s_lshl_b32 s46, s46, 10
    s_waitcnt lgkmcnt(0)
    ''')
    for j in range(8):
        k(f'v_mul_f32 v{SQ + j}, {f32bits(QS)}, v{S0 + j}')
    def scale_store(f, sbase, soff):
        for d in range(4):
            unpack(k, T0 + 2 * d, T0 + 2 * d + 1, f + d)
        for j in range(8):
            k(f'v_mul_f32 v{T0 + j}, v{T0 + j}, v{sbase + j}')
        for d in range(4):
            k(f'v_cvt_pk_bf16_f32 v{f + d}, v{T0 + 2 * d}, v{T0 + 2 * d + 1}')
        k(f'buffer_store_dwordx4 {vr(f, 4)}, v5, s[{SOUT}:{SOUT + 3}], {soff} offen')
    for q in range(4):
        scale_store(F0 + 4 * q, SQ, 's46')
        k('s_add_u32 s46, s46, 4096')
    k(f'''
    s_cmp_eq_u32 s43, 0
    s_cbranch_scc1 {L_END}
    s_add_u32 s46, s45, 32
    s_add_u32 s46, s46, s3
    s_lshl_b32 s46, s46, 10
    ''')
    scale_store(F0 + 16, S0, 's46')
    k('s_endpgm')
    k(f'''
    {L_SA}:
    v_and_b32 v5, 15, v2
    v_lshlrev_b32 v5, 4, v5
    s_lshr_b32 s45, s36, 2
    s_lshl_b32 s45, s45, 8
    s_and_b32 s46, s36, 3
    s_lshl_b32 s46, s46, 2
    s_add_u32 s45, s45, s46
    s_add_u32 s45, s45, {16 * 34 * 1024}
    s_lshl_b32 s46, s44, 10
    s_add_u32 s46, s46, s45
    s_waitcnt lgkmcnt(0)
    ''')
    for d in range(4):
        k(f'v_cvt_pk_bf16_f32 v{SQ + d}, v{S0 + 2 * d}, v{S0 + 2 * d + 1}')
    D0 = 68
    for q in range(5):
        k(f'v_mfma_f32_16x16x32_bf16 {vr(D0 + 4 * q, 4)}, {vr(SQ, 4)}, {vr(F0 + 4 * q, 4)}, 0')
    def bias_store(d, scale, soff):
        if scale:
            k(f'v_mul_f32 v{d}, {f32bits(QS)}, v{d}')
        k(f'v_cvt_pk_bf16_f32 v{d + 1}, v{d}, v{d}')
        k(f'v_and_b32 v{d + 1}, 0xffff0000, v{d + 1}')
        k(f'v_sub_f32 v{d + 1}, v{d}, v{d + 1}')
        k(f'v_cvt_pk_bf16_f32 v{d}, v{d}, v{d + 1}')
        k(f'buffer_store_dword v{d}, v5, s[{SOUT}:{SOUT + 3}], {soff} offen')
    for q in range(4):
        bias_store(D0 + 4 * q, True, 's46')
        k('s_add_u32 s46, s46, 4096')
    k(f'''
    s_cmp_eq_u32 s43, 0
    s_cbranch_scc1 {L_END}
    s_add_u32 s46, s3, 32
    s_lshl_b32 s46, s46, 10
    s_add_u32 s46, s46, s45
    ''')
    bias_store(D0 + 16, False, 's46')
    k('s_endpgm')
    k(f'{L_G1}:')
    srd_ws(k, SOUT, 4, 'MOD')
    k(f'''
    s_lshl_b32 s40, s36, 7
    buffer_store_dword v{W0}, v6, s[{SOUT}:{SOUT + 3}], s40 offen
    s_endpgm
    ''')
    SX = 8
    k(f'{L_LN}:')
    srd_arg_load(k, SX, A_X)
    srd_fin(k, SX, 2048 * 1024)
    X0 = 8
    k(f'''
    s_sub_u32 s32, s2, 128             ; tt
    v_and_b32 v3, 15, v2               ; t16
    v_lshrrev_b32 v4, 4, v2            ; g
    v_lshlrev_b32 v5, 10, v3
    v_lshl_add_u32 v5, v4, 3, v5
    s_lshl_b32 s33, s32, 14
    s_lshl_b32 s34, s3, 8
    s_add_u32 s34, s34, s33
    s_waitcnt lgkmcnt(0)
    ''')
    stamp(k, 2)
    for i in range(4):
        k(f'buffer_load_dwordx2 {vr(X0 + 4 * i, 2)}, v5, s[{SX}:{SX + 3}], s34 offen offset:{i * 64}')
        k(f'buffer_load_dwordx2 {vr(X0 + 4 * i + 2, 2)}, v5, s[{SX}:{SX + 3}], s34 offen offset:{i * 64 + 32}')
    srd_ws(k, SOUT, 4, 'XNF')
    U0 = 24
    k('v_mov_b32 v6, 0')
    k('v_mov_b32 v7, 0')
    for i in range(8):
        k(f's_waitcnt vmcnt({7 - i})')
        if i == 0:
            stamp(k, 3)
        for d in range(2):
            unpack(k, U0 + 4 * i + 2 * d, U0 + 4 * i + 2 * d + 1, X0 + 2 * i + d)
        for j in range(4):
            k(f'v_add_f32 v6, v6, v{U0 + 4 * i + j}')
            k(f'v_fmac_f32 v7, v{U0 + 4 * i + j}, v{U0 + 4 * i + j}')
    stamp(k, 4)
    ln_stats_and_scale(k, 6, 7, tmp=56, lane=2, t16=3, wave_s=3, ldsoff=0)
    stamp(k, 5)
    k('v_lshlrev_b32 v5, 4, v2')
    k('s_lshl_b32 s34, s3, 12')
    k('s_add_u32 s34, s34, s33')
    for i in range(4):
        for j in range(8):
            k(f'v_fma_f32 v{U0 + 8 * i + j}, v{U0 + 8 * i + j}, v56, v57')
        for d in range(4):
            k(f'v_cvt_pk_bf16_f32 v{X0 + 4 * i + d}, v{U0 + 8 * i + 2 * d}, v{U0 + 8 * i + 2 * d + 1}')
        k(f'buffer_store_dwordx4 {vr(X0 + 4 * i, 4)}, v5, s[{SOUT}:{SOUT + 3}], s34 offen offset:{i * 1024}')
    prof_exit(k, L_END, 0, 3, 8)
    return k


def ln_stats_and_scale(k, vS, vQ, tmp, lane, t16, wave_s, ldsoff):
    a, b = tmp, tmp + 1
    k(f'''
    v_permlane32_swap_b32 v{vS}, v{vQ}
    v_add_f32 v{a}, v{vS}, v{vQ}
    v_mov_b32 v{b}, v{a}
    v_permlane16_swap_b32 v{a}, v{b}
    v_add_f32 v{a}, v{a}, v{b}
    v_lshrrev_b32 v{b}, 5, v{lane}
    v_lshlrev_b32 v{b}, 8, v{b}
    v_lshl_add_u32 v{b}, v{t16}, 4, v{b}
    s_lshl_b32 s60, s{wave_s}, 2
    v_add_u32 v{b}, s60, v{b}
    ds_write_b32 v{b}, v{a} offset:{ldsoff}
    v_lshlrev_b32 v{b}, 4, v{t16}
    s_waitcnt lgkmcnt(0)
    s_barrier
    ds_read_b128 {vr(tmp + 2, 4)}, v{b} offset:{ldsoff}
    ds_read_b128 {vr(tmp + 6, 4)}, v{b} offset:{ldsoff + 256}
    s_waitcnt lgkmcnt(0)
    v_add_f32 v{tmp + 2}, v{tmp + 2}, v{tmp + 3}
    v_add_f32 v{tmp + 6}, v{tmp + 6}, v{tmp + 7}
    v_add_f32 v{tmp + 4}, v{tmp + 4}, v{tmp + 5}
    v_add_f32 v{tmp + 8}, v{tmp + 8}, v{tmp + 9}
    v_add_f32 v{tmp + 2}, v{tmp + 2}, v{tmp + 4}
    v_add_f32 v{tmp + 6}, v{tmp + 6}, v{tmp + 8}
    v_mul_f32 v{tmp + 2}, {f32bits(1.0 / 512)}, v{tmp + 2}      ; mean
    v_mul_f32 v{tmp + 6}, {f32bits(1.0 / 512)}, v{tmp + 6}      ; E[x^2]
    v_fma_f32 v{tmp + 6}, -v{tmp + 2}, v{tmp + 2}, v{tmp + 6}   ; var
    v_max_f32 v{tmp + 6}, 0, v{tmp + 6}
    v_cvt_pk_bf16_f32 v{tmp + 6}, v{tmp + 6}, v{tmp + 2}
    v_and_b32 v{tmp + 2}, 0xffff0000, v{tmp + 6}
    v_lshlrev_b32 v{tmp + 6}, 16, v{tmp + 6}
    v_add_f32 v{tmp + 6}, {f32bits(1e-5)}, v{tmp + 6}
    v_cvt_pk_bf16_f32 v{tmp + 6}, v{tmp + 6}, v{tmp + 6}
    v_lshlrev_b32 v{tmp + 6}, 16, v{tmp + 6}
    v_sqrt_f32 v{tmp + 6}, v{tmp + 6}
    v_cvt_pk_bf16_f32 v{tmp + 6}, v{tmp + 6}, v{tmp + 6}
    v_lshlrev_b32 v{tmp + 6}, 16, v{tmp + 6}
    v_rcp_f32 v{a}, v{tmp + 6}
    v_mul_f32 v{b}, -v{tmp + 2}, v{a}
    ''')
```

```python
from common import *

def gen_k1():
    k = Kern('k1_qkv_kernel')
    L_END, L_PACK, L_V1, L_V1E, L_V2, L_V2E, L_VST, L_P2, L_P1, L_PGO, L_PNS, L_P2a, L_P2b = [k.newlabel(x) for x in
        ('end', 'pack', 'v1', 'v1e', 'v2', 'v2e', 'vst', 'p2', 'p1', 'pgo', 'pns', 'p2a', 'p2b')]
    k(f'''
    s_cmp_ge_u32 s2, 288
    s_cbranch_scc1 {L_END}
    ''')
    stamp(k, 0, True)
    stamp(k, 1)
    k(f'''
    s_load_dwordx2 s[4:5], s[0:1], {A_WS}
    v_lshrrev_b32 v1, 6, v0
    v_and_b32 v2, 63, v0
    v_readfirstlane_b32 s3, v1
    v_lshlrev_b32 v3, 4, v2            ; lane*16
    s_cmp_ge_u32 s2, 256
    s_cbranch_scc1 {L_PACK}
    s_and_b32 s32, s2, 7
    s_lshr_b32 s33, s2, 3
    s_and_b32 s34, s33, 3
    s_lshl_b32 s32, s32, 2
    s_add_u32 s32, s32, s34            ; rb
    s_lshr_b32 s33, s33, 2             ; cb
    s_lshr_b32 s34, s33, 1             ; tte
    s_and_b32 s35, s33, 1              ; kv
    s_lshl_b32 s36, s3, 12             ; w*4096
    ''')
    SX, SW, SQ, SK = 8, 12, 16, 20
    for i in range(4):
        k(f'''
        s_add_u32 s37, s34, {i}
        s_and_b32 s37, s37, 3
        s_lshl_b32 s38, s32, 2
        s_add_u32 s37, s37, s38
        s_lshl_b32 s37, s37, 14
        s_add_u32 s{40 + i}, s37, s36
        ''')
    k(f'''
    s_mul_i32 s44, s3, {4 * 34 * 1024}
    s_lshl_b32 s45, s33, 12
    s_add_u32 s45, s45, s44
    s_lshl_b32 s46, s35, 10
    s_add_u32 s46, s46, {32 * 1024}
    s_add_u32 s47, s46, {16 * 34 * 1024}
    s_add_u32 s46, s46, s44
    s_lshl_b32 s48, s33, 12
    s_add_u32 s48, s48, {16 * 34 * 1024}
    s_waitcnt lgkmcnt(0)
    ''')
    stamp(k, 2)
    srd_ws(k, SW, 4, 'WQKV')
    srd_ws(k, SX, 4, 'XNF')
    XB, WB, BB, ACC, BD, ONE = 8, 72, 152, 172, 152, 4
    BD = 232
    ACC = 164 - 0
    BB, ACC = 152, 172
    for c in range(4):
        k(f'buffer_load_dwordx4 {vr(BB + 4 * c, 4)}, v3, s[{SW}:{SW + 3}], s48 offen offset:{c * 1024}')
    k(f'buffer_load_dwordx4 {vr(BB + 16, 4)}, v3, s[{SW}:{SW + 3}], s47 offen')
    for s in range(4):
        for c in range(4):
            k(f'buffer_load_dwordx4 {vr(XB + 16 * s + 4 * c, 4)}, v3, s[{SX}:{SX + 3}], s{40 + c} offen offset:{s * 1024}')
            k(f'buffer_load_dwordx4 {vr(WB + 20 * s + 4 * c, 4)}, v3, s[{SW}:{SW + 3}], s45 offen offset:{c * 1024}')
        k(f'buffer_load_dwordx4 {vr(WB + 20 * s + 16, 4)}, v3, s[{SW}:{SW + 3}], s46 offen')
        if s < 3:
            k(f's_add_u32 s45, s45, {34 * 1024}')
            k(f's_add_u32 s46, s46, {34 * 1024}')
    for d in range(4):
        k(f'v_mov_b32 v{ONE + d}, 0x3e803e80')
    srd_ws(k, SQ, 4, 'QF')
    stamp(k, 3)
    k('s_waitcnt vmcnt(36)')
    stamp(k, 4)
    for c in range(4):
        k(f'v_mfma_f32_16x16x32_bf16 {vr(240 + 4 * c, 4)}, {vr(BB + 4 * c, 4)}, {vr(ONE, 4)}, 0')
    EX = ACC + 64
    k(f'''
    s_cmp_eq_u32 s35, 1
    s_cbranch_scc1 {L_V1}
    v_mfma_f32_16x16x32_bf16 {vr(EX, 4)}, {vr(BB + 16, 4)}, {vr(ONE, 4)}, 0
    s_branch {L_V1E}
    {L_V1}:
    v_mfma_f32_16x16x32_bf16 {vr(EX, 4)}, {vr(ONE, 4)}, {vr(BB + 16, 4)}, 0
    {L_V1E}:
    ''')
    for s in range(4):
        k(f's_waitcnt vmcnt({27 - 9 * s + 1})')
        for i in range(4):
            for c in range(4):
                C = vr(240 + 4 * c, 4) if s == 0 else vr(ACC + 16 * i + 4 * c, 4)
                k(f'v_mfma_f32_16x16x32_bf16 {vr(ACC + 16 * i + 4 * c, 4)}, {vr(WB + 20 * s + 4 * c, 4)}, {vr(XB + 16 * s + 4 * i, 4)}, {C}')
    k(f'''
    s_waitcnt vmcnt(0)
    s_cmp_eq_u32 s35, 1
    s_cbranch_scc1 {L_V2}
    ''')
    for s in range(4):
        k(f'v_mfma_f32_16x16x32_bf16 {vr(EX, 4)}, {vr(WB + 20 * s + 16, 4)}, {vr(XB + 16 * s, 4)}, {vr(EX, 4)}')
    k(f's_branch {L_V2E}')
    k(f'{L_V2}:')
    for s in range(4):
        k(f'v_mfma_f32_16x16x32_bf16 {vr(EX, 4)}, {vr(XB + 16 * s, 4)}, {vr(WB + 20 * s + 16, 4)}, {vr(EX, 4)}')
    k(f'{L_V2E}:')
    stamp(k, 5)
    k(f'''
    s_lshl_b32 s37, s3, 14
    v_add_u32 v4, s37, v3
    v_add_u32 v5, s36, v3
    v_add_u32 v3, 0x10000, v3
    s_lshl_b32 s37, s3, 10
    v_add_u32 v6, s37, v3
    ''')
    for t in range(16):
        k(f'ds_write_b128 v4, {vr(ACC + 4 * t, 4)} offset:{t * 1024}')
    k(f'ds_write_b128 v6, {vr(ACC + 64, 4)}')
    k(f'''
    v_and_b32 v6, 15, v2               ; t16
    v_lshrrev_b32 v7, 4, v2            ; g
    v_lshrrev_b32 v72, 3, v6
    v_lshlrev_b32 v72, 13, v72
    v_lshrrev_b32 v73, 1, v7
    v_lshl_add_u32 v72, v73, 9, v72
    v_and_b32 v73, 7, v6
    v_lshl_add_u32 v72, v73, 4, v72
    v_and_b32 v73, 1, v7
    v_lshl_add_u32 v72, v73, 3, v72
    s_add_u32 s37, s34, s3
    s_and_b32 s37, s37, 3
    s_lshl_b32 s38, s32, 2
    s_add_u32 s37, s37, s38            ; ta
    s_lshl_b32 s37, s37, 14
    s_lshl_b32 s39, s33, 10
    s_add_u32 s37, s37, s39            ; Q soffset
    s_add_u32 s38, s38, s34            ; tae
    s_waitcnt lgkmcnt(0)
    s_barrier
    ''')
    R = 8
    stamp(k, 6)
    for c in range(4):
        for p in range(4):
            k(f'ds_read_b128 {vr(R + 16 * c + 4 * p, 4)}, v5 offset:{p * 16 * 1024 + c * 1024}')
    def sum4(r):
        for e in range(4):
            k(f'v_add_f32 v{r + e}, v{r + e}, v{r + 4 + e}')
        for e in range(4):
            k(f'v_add_f32 v{r + 8 + e}, v{r + 8 + e}, v{r + 12 + e}')
        for e in range(4):
            k(f'v_add_f32 v{r + e}, v{r + e}, v{r + 8 + e}')
        k(f'v_cvt_pk_bf16_f32 v{r + 4}, v{r}, v{r + 1}')
        k(f'v_cvt_pk_bf16_f32 v{r + 5}, v{r + 2}, v{r + 3}')
    srd_ws(k, SK + 4, 4, 'NRM')
    for c in range(4):
        k(f's_waitcnt lgkmcnt({12 - 4 * c})')
        r = R + 16 * c
        sum4(r)
        k(f'buffer_store_dwordx2 {vr(r + 4, 2)}, v72, s[{SQ}:{SQ + 3}], s37 offen offset:{c * 128}')
        k(f'v_mul_f32 v{r + 8}, v{r}, v{r}')
        for e in range(1, 4):
            k(f'v_fmac_f32 v{r + 8}, v{r + e}, v{r + e}')
    def lane_reduce(a, b):
        k(f'''
        v_mov_b32 v{b}, v{a}
        v_permlane32_swap_b32 v{a}, v{b}
        v_add_f32 v{a}, v{a}, v{b}
        v_mov_b32 v{b}, v{a}
        v_permlane16_swap_b32 v{a}, v{b}
        v_add_f32 v{a}, v{a}, v{b}
        v_max_f32_dpp v{a}, v{a}, v{a} row_ror:8 row_mask:0xf bank_mask:0xf
        v_max_f32_dpp v{a}, v{a}, v{a} row_ror:4 row_mask:0xf bank_mask:0xf
        v_max_f32_dpp v{a}, v{a}, v{a} row_ror:2 row_mask:0xf bank_mask:0xf
        v_max_f32_dpp v{a}, v{a}, v{a} row_ror:1 row_mask:0xf bank_mask:0xf
        ''')
    k(f'''
    v_max3_f32 v{R + 8}, v{R + 8}, v{R + 24}, v{R + 40}
    v_max_f32 v{R + 8}, v{R + 8}, v{R + 56}
    v_mov_b32 v73, 0
    s_lshr_b32 s37, s37, 14            ; ta
    s_lshl_b32 s37, s37, 3
    s_add_u32 s37, s37, s33
    s_lshl_b32 s37, s37, 2
    ''')
    lane_reduce(R + 8, R + 9)
    k(f'''
    buffer_store_dword v{R + 8}, v73, s[{SK + 4}:{SK + 7}], s37 offen offset:512
    s_cmp_lg_u32 s3, 3
    s_cbranch_scc1 {L_END}
    ''')
    R = 76
    for p in range(4):
        k(f'ds_read_b128 {vr(R + 4 * p, 4)}, v3 offset:{p * 1024}')
    srd_ws(k, SK, 4, 'KVF')
    k(f'''
    v_lshrrev_b32 v75, 1, v7           ; g>>1
    v_and_b32 v7, 1, v7                ; g&1
    s_lshr_b32 s39, s38, 1
    s_lshl_b32 s39, s39, 11            ; tile*2048
    s_and_b32 s40, s38, 1
    s_waitcnt lgkmcnt(0)
    ''')
    sum4(R)
    k(f'''
    s_cmp_eq_u32 s35, 1
    s_cbranch_scc1 {L_VST}
    ''')
    k(f'''
    v_and_b32 v72, 3, v6
    v_bfe_u32 v74, v6, 2, 1
    v_lshl_add_u32 v72, v74, 3, v72
    v_lshrrev_b32 v74, 3, v6
    v_lshl_add_u32 v72, v74, 2, v72
    v_lshlrev_b32 v72, 4, v72
    v_lshl_add_u32 v72, v75, 9, v72
    v_lshl_add_u32 v72, v7, 3, v72
    s_lshl_b32 s40, s40, 8
    s_add_u32 s39, s39, s40
    buffer_store_dwordx2 {vr(R + 4, 2)}, v72, s[{SK}:{SK + 3}], s39 offen
    ''')
    unpack(k, R, R + 1, R + 4)
    unpack(k, R + 2, R + 3, R + 5)
    k(f'''
    v_mul_f32 v{R + 8}, v{R}, v{R}
    v_fmac_f32 v{R + 8}, v{R + 1}, v{R + 1}
    v_fmac_f32 v{R + 8}, v{R + 2}, v{R + 2}
    v_fmac_f32 v{R + 8}, v{R + 3}, v{R + 3}
    s_lshl_b32 s39, s38, 2
    ''')
    lane_reduce(R + 8, R + 9)
    k(f'''
    buffer_store_dword v{R + 8}, v73, s[{SK + 4}:{SK + 7}], s39 offen
    s_endpgm
    {L_VST}:
    v_lshlrev_b32 v72, 4, v6
    v_lshl_add_u32 v72, v75, 8, v72
    v_lshl_add_u32 v72, v7, 3, v72
    s_lshl_b32 s40, s40, 9
    s_add_u32 s39, s39, s40
    buffer_store_dwordx2 {vr(R + 4, 2)}, v72, s[{SK}:{SK + 3}], s39 offen offset:1024
    s_endpgm
    ''')
    SS, SD, SM = 8, 12, 16
    k(f'''
    {L_PACK}:
    s_sub_u32 s32, s2, 256
    s_mov_b32 s45, 0
    s_movk_i32 s40, 1024
    s_cmp_ge_u32 s32, 144
    s_cbranch_scc1 {L_P1}
    s_cmp_ge_u32 s32, 32
    s_cbranch_scc1 {L_P2}
    ''')
    srd_arg_load(k, SS, A_WO)
    srd_fin(k, SS, 512 * 1024)
    k(f'''
    s_lshr_b32 s46, s32, 1
    s_and_b32 s43, s32, 1
    s_lshl_b32 s41, s46, 5
    s_add_u32 s42, s41, 16
    s_lshl_b32 s44, s32, 14
    s_waitcnt lgkmcnt(0)
    ''')
    srd_ws(k, SD, 4, 'WOF')
    k(f's_branch {L_PGO}')
    k(f'{L_P2}:')
    srd_arg_load(k, SS, B_W2)
    srd_fin(k, SS, 1792 * 1024)
    k(f'''
    s_sub_u32 s32, s32, 32
    s_lshr_b32 s46, s32, 1             ; ks 0..55
    s_and_b32 s43, s32, 1
    s_lshl_b32 s44, s32, 14
    s_mul_i32 s33, s46, 37
    s_lshr_b32 s33, s33, 8             ; c = ks/7
    s_mul_i32 s34, s33, 7
    s_sub_u32 s34, s46, s34            ; ksl
    s_mul_i32 s33, s33, 224
    s_lshl_b32 s35, s34, 5
    s_add_u32 s41, s33, s35            ; 224c + 32 ksl
    s_cmp_ge_u32 s34, 3
    s_cselect_b32 s35, 16, 0
    s_add_u32 s41, s41, s35
    s_add_u32 s42, s41, 16
    s_cmp_lg_u32 s34, 6
    s_cbranch_scc1 {L_P2a}
    s_add_u32 s41, s33, 96
    s_add_u32 s42, s33, 208
    {L_P2a}:
    s_waitcnt lgkmcnt(0)
    ''')
    srd_ws(k, SD, 4, 'W2F')
    k(f's_branch {L_PGO}')
    k(f'{L_P1}:')
    srd_arg_load(k, SS, B_W1)
    srd_fin(k, SS, 512 * 3584)
    k(f'''
    s_sub_u32 s32, s32, 144
    s_mul_i32 s46, s32, 147
    s_lshr_b32 s46, s46, 10            ; ks = q/7 (q<112)
    s_mul_i32 s33, s46, 7
    s_sub_u32 s43, s32, s33            ; cg
    s_lshl_b32 s41, s46, 5
    s_add_u32 s42, s41, 16
    s_lshl_b32 s44, s32, 14
    s_movk_i32 s40, 3584
    s_mov_b32 s45, 1
    s_waitcnt lgkmcnt(0)
    ''')
    srd_ws(k, SD, 4, 'W1F')
    k(f'{L_PGO}:')
    stamp(k, 2)
    srd_ws(k, SM, 4, 'MOD')
    k(f'''
    s_sub_u32 s42, s42, 16
    s_cmp_lt_u32 s3, 2
    s_cselect_b32 s33, s41, s42
    s_lshl_b32 s34, s3, 3
    s_add_u32 s33, s33, s34
    s_mul_i32 s33, s33, s40
    s_lshl_b32 s34, s43, 9
    s_add_u32 s33, s33, s34            ; soffset
    s_lshl_b32 s35, s40, 1
    v_lshrrev_b32 v4, 5, v2
    v_mul_u32_u24 v4, s40, v4
    v_and_b32 v5, 31, v2
    v_lshl_add_u32 v4, v5, 4, v4
    s_lshl_b32 s36, s3, 12
    ''')
    for i in range(4):
        k(f's_mov_b32 m0, s36')
        k(f's_add_u32 s36, s36, 1024')
        k(f'buffer_load_dwordx4 v4, s[{SS}:{SS + 3}], s33 offen lds')
        k(f's_add_u32 s33, s33, s35')
    S0, B0, T0, F0, D0 = 32, 40, 48, 12, 56
    k(f'''
    v_lshrrev_b32 v7, 4, v2            ; g
    v_lshlrev_b32 v8, 4, v7
    s_lshl_b32 s33, s46, 7             ; ks*32*4
    s_and_b32 s33, s33, 0x7ff
    buffer_load_dwordx4 {vr(S0, 4)}, v8, s[{SM}:{SM + 3}], s33 offen offset:{4096 - 4096}
    ''')
    k.items.pop()
    k(f's_add_u32 s34, s33, 4096')
    k(f'buffer_load_dwordx4 {vr(S0, 4)}, v8, s[{SM}:{SM + 3}], s34 offen')
    k(f'buffer_load_dwordx4 {vr(S0 + 4, 4)}, v8, s[{SM}:{SM + 3}], s34 offen offset:64')
    k(f'buffer_load_dwordx4 {vr(B0, 4)}, v8, s[{SM}:{SM + 3}], s33 offen offset:2048')
    k(f'buffer_load_dwordx4 {vr(B0 + 4, 4)}, v8, s[{SM}:{SM + 3}], s33 offen offset:{2048 + 64}')
    k(f'''
    v_bfe_u32 v9, v2, 2, 2
    v_lshl_add_u32 v9, v7, 2, v9       ; row
    v_and_b32 v10, 3, v2
    v_lshlrev_b32 v10, 3, v10
    v_lshl_add_u32 v10, v9, 9, v10
    s_lshl_b32 s33, s3, 5
    v_add_u32 v10, s33, v10
    s_lshl_b32 s33, s3, 10
    s_add_u32 s48, s44, s33
    s_add_u32 s49, s48, 4096
    s_add_u32 s50, s48, 8192
    s_add_u32 s51, s48, 12288
    ''')
    stamp(k, 3)
    k('s_waitcnt vmcnt(0)')
    stamp(k, 4)
    k('s_barrier')
    stamp(k, 5)
    for q in range(4):
        k(f'ds_read_b64_tr_b16 {vr(F0 + 4 * q, 2)}, v10 offset:{q * 128}')
        k(f'ds_read_b64_tr_b16 {vr(F0 + 4 * q + 2, 2)}, v10 offset:{q * 128 + 16 * 512}')
    k(f'''
    s_cmp_eq_u32 s45, 0
    s_cbranch_scc1 {L_PNS}
    ''')
    for j in range(8):
        k(f'v_add_f32 v{S0 + j}, 1.0, v{S0 + j}')
    for d in range(4):
        k(f'v_cvt_pk_bf16_f32 v{T0 + d}, v{S0 + 2 * d}, v{S0 + 2 * d + 1}')
    for d in range(4):
        unpack(k, S0 + 2 * d, S0 + 2 * d + 1, T0 + d)
    for j in range(8):
        k(f'v_mul_f32 v{S0 + j}, {f32bits(LOG2E)}, v{S0 + j}')
    for d in range(4):
        k(f'v_cvt_pk_bf16_f32 v{B0 + d}, v{B0 + 2 * d}, v{B0 + 2 * d + 1}')
    k('s_waitcnt lgkmcnt(0)')
    for q in range(4):
        k(f'v_mfma_f32_16x16x32_bf16 {vr(D0 + 4 * q, 4)}, {vr(B0, 4)}, {vr(F0 + 4 * q, 4)}, 0')
    for q in range(4):
        f = F0 + 4 * q
        for d in range(4):
            unpack(k, T0 + 2 * d, T0 + 2 * d + 1, f + d)
        for j in range(8):
            k(f'v_mul_f32 v{T0 + j}, v{T0 + j}, v{S0 + j}')
        for d in range(4):
            k(f'v_cvt_pk_bf16_f32 v{f + d}, v{T0 + 2 * d}, v{T0 + 2 * d + 1}')
    k(f'''
    v_and_b32 v5, 15, v2
    v_lshlrev_b32 v5, 4, v5
    s_lshr_b32 s33, s46, 2
    s_lshl_b32 s33, s33, 8
    s_and_b32 s34, s46, 3
    s_lshl_b32 s34, s34, 2
    s_add_u32 s33, s33, s34
    s_lshl_b32 s34, s43, 4
    s_add_u32 s34, s34, s3
    s_mul_i32 s35, s46, 7168
    s_add_u32 s35, s35, 7168
    ''')
    for q in range(4):
        d = D0 + 4 * q
        k(f'''
        s_mul_i32 s36, s34, 147
        s_lshr_b32 s36, s36, 10        ; fb
        s_mul_i32 s36, s36, 112
        s_add_u32 s36, s36, s34        ; fb*119 + f
        s_lshl_b32 s36, s36, 10
        s_add_u32 s{48 + q}, s36, s35
        s_add_u32 s36, s36, s33
        s_add_u32 s34, s34, 4
        ''')
        k(f'v_mul_f32 v{d}, {f32bits(LOG2E)}, v{d}')
        k(f'v_cvt_pk_bf16_f32 v{d + 1}, v{d}, v{d}')
        k(f'v_and_b32 v{d + 1}, 0xffff0000, v{d + 1}')
        k(f'v_sub_f32 v{d + 1}, v{d}, v{d + 1}')
        k(f'v_cvt_pk_bf16_f32 v{d}, v{d}, v{d + 1}')
        k(f'buffer_store_dword v{d}, v5, s[{SD}:{SD + 3}], s36 offen')
    k(f'{L_PNS}:')
    stamp(k, 6)
    k('s_waitcnt lgkmcnt(0)')
    for q in range(4):
        k(f'buffer_store_dwordx4 {vr(F0 + 4 * q, 4)}, v3, s[{SD}:{SD + 3}], s{48 + q} offen')
    prof_exit(k, L_END, 1, 3, 9)
    return k
```

```python
from common import *

PAR = 32768
PBO, PBL, OB = 0, 16384, 17408
XS, GA, FLAG, LNS = 20480, 28672, 30720, 30976
MT, QS_ = PAR + 20480, 61440
LDS_BYTES = 61440 + 8192 + 1024

def gen_k2():
    k = Kern('k2_attn_kernel')
    L = lambda n: k.newlabel(n)
    L_END, L_MAIN, L_LOOP, L_FB = L('end'), L('main'), L('loop'), L('fb')
    S = [10, 26]
    P, C, Q, ACC, T = 42, 50, 66, 70, 86
    AK, AV, AO, AW = 0, 32, 96, 112
    SW, SX = 8, 12
    sW, sJ, sTHR, sMODE, sWO, sONE, sLIM = 3, 16, 17, 18, 19, 20, 21
    sMASK, sBAD, sTMP = 22, 24, 26
    sG8 = 28
    k(f'''
    s_cmp_ge_u32 s2, 256
    s_cbranch_scc1 {L_END}
    ''')
    stamp(k, 0, True)
    stamp(k, 1)
    k(f'''
    s_load_dwordx2 s[{SW}:{SW + 1}], s[0:1], {A_WS}
    s_load_dwordx2 s[{SX}:{SX + 1}], s[0:1], {A_X}
    v_lshrrev_b32 v1, 6, v0
    v_and_b32 v0, 63, v0               ; lane
    v_readfirstlane_b32 s{sW}, v1
    v_lshlrev_b32 v1, 4, v0            ; lane*16
    v_lshlrev_b32 v2, 3, v0            ; lane*8
    v_and_b32 v3, 7, v0
    v_lshlrev_b32 v4, 2, v3            ; (lane&7)*4
    v_lshrrev_b32 v5, 5, v0            ; hh
    v_and_b32 v6, 15, v0
    v_lshlrev_b32 v6, 4, v6
    v_lshl_add_u32 v6, v5, 8, v6       ; V voffset
    v_lshrrev_b32 v7, 3, v0
    v_lshlrev_b32 v7, 10, v7
    v_lshl_add_u32 v7, v3, 4, v7
    v_lshlrev_b32 v8, 2, v0            ; lane*4
    s_mov_b32 s{SW + 2}, 0x2000000
    s_mov_b32 s{SW + 3}, 0x20000
    s_mov_b32 s{SX + 2}, {2048 * 1024}
    s_mov_b32 s{SX + 3}, 0x20000
    s_mov_b32 s{sMASK}, 0xffff
    s_mov_b32 s{sMASK + 1}, 0xffff
    s_mov_b32 s{sONE}, 0x3f803f80
    s_mov_b32 s{sLIM}, {f32bits(2.0 ** -90)}
    s_mov_b32 s{sMODE}, 0
    s_lshl_b32 s{sG8}, s2, 13
    s_lshr_b32 s30, s2, 1
    s_lshl_b32 s30, s30, 5
    s_add_u32 s30, s30, {WS['NRM'][0] + 512}
    s_mov_b32 s31, {WS['NRM'][0]}
    s_add_u32 s32, s{sG8}, {WS['QF'][0]}
    s_lshl_b32 s33, s{sW}, 10          ; w*1024
    s_add_u32 s34, s32, s33
    s_add_u32 s35, s33, {QS_}
    s_mov_b32 m0, s35
    s_lshl_b32 s36, s{sW}, 14
    s_add_u32 s36, s36, {WS['KVF'][0]}
    s_cmp_lt_u32 s{sW}, 4
    s_cselect_b32 s{sTHR}, 1, 100
    s_waitcnt lgkmcnt(0)
    buffer_load_dwordx2 {vr(T, 2)}, v2, s[{SW}:{SW + 3}], s31 offen
    buffer_load_dword v{T + 2}, v4, s[{SW}:{SW + 3}], s30 offen
    buffer_load_dwordx4 {vr(Q, 4)}, v1, s[{SW}:{SW + 3}], s32 offen
    buffer_load_dwordx4 {ar(AK, 4)}, v1, s[{SW}:{SW + 3}], s36 offen
    buffer_load_dwordx4 v1, s[{SW}:{SW + 3}], s34 offen lds
    ''')
    for t in range(8):
        if t < 7:
            k(f'buffer_load_dwordx4 {ar(AK + 4 * (t + 1), 4)}, v1, s[{SW}:{SW + 3}], s36 offen offset:2048')
        k(f's_mov_b64 exec, s[{sMASK}:{sMASK + 1}]')
        k(f'buffer_load_dwordx4 {ar(AV + 8 * t, 4)}, v6, s[{SW}:{SW + 3}], s36 offen offset:1024')
        k(f'buffer_load_dwordx4 {ar(AV + 8 * t + 4, 4)}, v6, s[{SW}:{SW + 3}], s36 offen offset:1536')
        k(f's_mov_b64 exec, -1')
        k(f's_add_u32 s36, s36, 2048')
    k(f'''
    s_add_u32 s35, s33, {XS}
    s_mov_b32 m0, s35
    s_lshl_b32 s36, s{sW}, 7
    s_add_u32 s36, s36, s{sG8}
    buffer_load_dwordx4 v7, s[{SX}:{SX + 3}], s36 offen lds
    s_lshl_b32 s36, s{sW}, 8
    s_add_u32 s35, s36, {GA}
    s_mov_b32 m0, s35
    s_add_u32 s36, s36, {WS['MOD'][0]}
    buffer_load_dword v8, s[{SW}:{SW + 3}], s36 offen lds
    s_not_b64 exec, s[{sMASK}:{sMASK + 1}]
    ''')
    stamp(k, 2)
    for i in range(64):
        k(f'v_accvgpr_write_b32 a{AV + i}, s{sONE} ;nocheck')
    k('s_mov_b64 exec, -1')
    k(f'''
    v_mov_b32 v9, 0
    ds_write_b32 v9, v9 offset:{FLAG}
    s_waitcnt vmcnt(28)
    v_max_f32 v{T}, v{T}, v{T + 1}
    ''')
    for rot in (8, 4, 2, 1):
        k(f'v_max_f32_dpp v{T}, v{T}, v{T} row_ror:{rot} row_mask:0xf bank_mask:0xf')
        if rot < 8:
            k(f'v_max_f32_dpp v{T + 2}, v{T + 2}, v{T + 2} row_ror:{rot} row_mask:0xf bank_mask:0xf')
    k(f'''
    v_mov_b32 v{T + 1}, v{T}
    v_permlane32_swap_b32 v{T}, v{T + 1}
    v_max_f32 v{T}, v{T}, v{T + 1}
    v_mov_b32 v{T + 1}, v{T}
    v_permlane16_swap_b32 v{T}, v{T + 1}
    v_max_f32 v{T}, v{T}, v{T + 1}
    v_mul_f32 v{T}, v{T}, v{T + 2}
    v_sqrt_f32 v{T}, v{T}
    ''')
    for i in range(16):
        k(f'v_mul_f32 v{C + i}, -1.0, v{T}')

    def load_C(tmp):
        k(f'''
        ds_read_b128 {vr(tmp, 4)}, v9
        ds_read_b128 {vr(tmp + 4, 4)}, v9 offset:16
        v_add_u32 v9, 1024, v9
        s_waitcnt lgkmcnt(0)
        v_max3_f32 v{tmp}, v{tmp}, v{tmp + 1}, v{tmp + 2}
        v_max3_f32 v{tmp + 3}, v{tmp + 3}, v{tmp + 4}, v{tmp + 5}
        v_max3_f32 v{tmp}, v{tmp}, v{tmp + 6}, v{tmp + 7}
        v_max_f32 v{tmp}, v{tmp}, v{tmp + 3}
        ''')
        for i in range(16):
            k(f'v_mul_f32 v{C + i}, -1.0, v{tmp}')

    def wo_loads(dst, regf):
        for ksl in range(2):
            for c in range(4):
                k(f'buffer_load_dwordx4 {regf(dst + 16 * ksl + 4 * c, 4)}, v1, s[{SW}:{SW + 3}], s{sWO} offen offset:{c * 1024}')
            k(f's_add_u32 s{sWO}, s{sWO}, 32768')

    k(f'''
    {L_MAIN}:
    s_lshl_b32 s{sWO}, s{sW}, 12
    s_add_u32 s{sWO}, s{sWO}, {WS['WOF'][0]}
    ''')
    wo_loads(AW, ar)
    k(f'''
    s_lshl_b32 s33, s{sW}, 11
    v_add_u32 v2, s33, v1
    v_and_b32 v3, 31, v0
    v_lshlrev_b32 v3, 5, v3
    s_lshl_b32 s33, s{sW}, 2
    v_add_u32 v3, s33, v3
    s_lshl_b32 s33, s{sW}, 9
    s_add_u32 s33, s33, {PAR}
    v_lshl_add_u32 v4, v0, 3, s33
    v_lshrrev_b32 v5, 1, v0            ; n
    v_lshlrev_b32 v8, 5, v5
    v_lshrrev_b32 v6, 4, v5            ; ksl
    v_lshlrev_b32 v6, 9, v6
    v_and_b32 v7, 7, v5
    v_lshl_add_u32 v6, v7, 4, v6
    v_bfe_u32 v7, v5, 3, 1
    v_lshl_add_u32 v6, v7, 3, v6
    v_and_b32 v7, 1, v0
    v_lshl_add_u32 v6, v7, 2, v6
    s_lshl_b32 s33, s{sW}, 7
    s_add_u32 s33, s33, {PAR}
    v_add_u32 v6, s33, v6
    v_add_u32 v5, {PAR}, v8
    v_lshrrev_b32 v7, 4, v0
    v_lshlrev_b32 v7, 3, v7
    v_and_b32 v8, 7, v0
    v_add_u32 v7, v7, v8
    v_lshlrev_b32 v7, 4, v7
    v_add_u32 v7, {PAR}, v7
    v_add_u32 v8, {QS_ + 1024}, v1     ; Q read
    s_mov_b32 s{sJ}, 0
    s_mov_b64 s[{sBAD}:{sBAD + 1}], 0
    s_mov_b64 vcc, 0
    ''')
    for i in range(16):
        k(f'v_mov_b32 v{ACC + i}, 0')
    stamp(k, 3)
    k(f'''
    s_waitcnt vmcnt(34)
    v_mfma_f32_32x32x16_bf16 {vr(S[0], 16)}, {ar(AK, 4)}, {vr(Q, 4)}, {vr(C, 16)}
    v_exp_f32 v{S[0]}, v{S[0]}
    v_exp_f32 v{S[0] + 1}, v{S[0] + 1}
    {L_LOOP}:
    ''')
    if PROF:
        k('s_memtime s[62:63]')
        k('s_waitcnt lgkmcnt(0)')
        for i in range(7):
            k(f's_mov_b32 s{68 + i}, s{69 + i}')
        k('s_mov_b32 s75, s62')
    def ex(X, a, b):
        for i in range(a, b):
            k(f'v_exp_f32 v{X + i}, v{X + i}')
    def cv(X, a, b):
        for i in range(a, b):
            k(f'v_cvt_pk_bf16_f32 v{P + i}, v{X + 2 * i}, v{X + 2 * i + 1}')
    def pb_write():
        k(f'''
        ds_write_b128 v2, {ar(AO, 4)} offset:{PBO}
        ds_write_b128 v2, {ar(AO + 4, 4)} offset:{PBO + 1024}
        ds_write_b32 v3, a{AO + 8} offset:{PBL}
        ''')
    def red_reads():
        for p in range(8):
            k(f'ds_read_b64 {vr(T + 2 * p, 2)}, v4 offset:{PBO + p * 2048}')
        k(f'ds_read_b128 {vr(T + 16, 4)}, v5 offset:{PBL}')
        k(f'ds_read_b128 {vr(T + 20, 4)}, v5 offset:{PBL + 16}')
    def red_calc():
        pk = lambda a, b: k(f'v_pk_add_f32 {vr(T + a, 2)}, {vr(T + a, 2)}, {vr(T + b, 2)}')
        k('s_waitcnt lgkmcnt(0)')
        pk(16, 18); pk(20, 22); pk(0, 2); pk(16, 20); pk(4, 6); pk(8, 10)
        k(f'v_add_f32 v{T + 16}, v{T + 16}, v{T + 17}')
        pk(12, 14)
        k(f'v_rcp_f32 v{T + 17}, v{T + 16}')
        pk(0, 4); pk(8, 12)
        k(f'v_cmp_nge_f32 s[{sTMP}:{sTMP + 1}], v{T + 16}, s{sLIM}')
        pk(0, 8)
        k(f'v_pk_mul_f32 {vr(T, 2)}, {vr(T, 2)}, {vr(T + 16, 2)} op_sel:[0,1] op_sel_hi:[1,1]')
        k(f's_or_b64 s[{sBAD}:{sBAD + 1}], s[{sBAD}:{sBAD + 1}], s[{sTMP}:{sTMP + 1}]')
        k(f'v_cvt_pk_bf16_f32 v{T}, v{T}, v{T + 1}')
        k(f'ds_write_b32 v6, v{T} offset:{OB}')
    def oproj(idx, wreg, B, nc=''):
        for i in idx:
            ksl, c = divmod(i, 4)
            k(f'v_mfma_f32_16x16x32_bf16 {vr(ACC + 4 * c, 4)}, {wreg(16 * ksl + 4 * c)}, {vr(B + 4 * ksl, 4)}, {vr(ACC + 4 * c, 4)} {nc}')
    aw = lambda o: ar(AW + o, 4)
    def guard_red(fn):
        l = L('nr')
        k(f's_cmp_ge_u32 s{sJ}, s{sTHR}')
        k(f's_cbranch_scc0 {l}')
        fn()
        k(f'{l}:')
    def guard_op(fn):
        l = L('no')
        k(f's_cbranch_vccz {l}')
        fn()
        k(f'{l}:')

    for t in range(8):
        X, Y = S[t & 1], S[(t + 1) & 1]
        ex(X, 2, 8)
        if t == 7:
            l = L('nc')
            k(f's_cmp_eq_u32 s{sMODE}, 0')
            k(f's_cbranch_scc1 {l}')
            load_C(T + 8)
            k(f'{l}:')
            k('s_waitcnt vmcnt(10) lgkmcnt(0)')
        else:
            k(f's_waitcnt vmcnt({33 - (3 * t + 3)})')
        k(f'v_mfma_f32_32x32x16_bf16 {vr(Y, 16)}, {ar(AK + 4 * ((t + 1) & 7), 4)}, {vr(Q, 4)}, {vr(C, 16)}')
        if t == 6:
            k(f'ds_read_b128 {vr(Q, 4)}, v8')
            k(f'v_add_u32 v8, 1024, v8')
        cv(X, 0, 4)
        ex(X, 8, 12)
        if t == 0:
            pb_write()
        Cin = '0' if t == 0 else ar(AO, 16)
        k(f'v_mfma_f32_32x32x16_bf16 {ar(AO, 16)}, {ar(AV + 8 * t, 4)}, {vr(P, 4)}, {Cin}')
        if t == 0:
            k(f'v_xor_b32 v2, {PAR}, v2')
            k(f'v_xor_b32 v3, {PAR}, v3')
        ex(X, 12, 14)
        cv(X, 4, 6)
        ex(X, 14, 16)
        if t == 0:
            k('s_waitcnt lgkmcnt(0)')
            k('s_barrier')
        if t == 5:
            guard_op(lambda: (k('s_waitcnt vmcnt(0) lgkmcnt(0)'), oproj([0, 1], aw, T)))
        if t == 6:
            guard_op(lambda: oproj([4, 5], aw, T, ';nocheck'))
        cv(X, 6, 8)
        ex(Y, 0, 2)
        k(f'v_mfma_f32_32x32x16_bf16 {ar(AO, 16)}, {ar(AV + 8 * t + 4, 4)}, {vr(P + 4, 4)}, {ar(AO, 16)}')
        if t == 0:
            guard_red(red_reads)
        if t == 2:
            guard_red(lambda: (red_calc(), k(f'v_xor_b32 v4, {PAR}, v4\nv_xor_b32 v5, {PAR}, v5\nv_xor_b32 v6, {PAR}, v6')))
        if t == 4:
            k(f'ds_read_b128 {vr(T, 4)}, v7 offset:{OB}')
            k(f'ds_read_b128 {vr(T + 4, 4)}, v7 offset:{OB + 512}')
            k(f'v_xor_b32 v7, {PAR}, v7')
        if t == 5:
            guard_op(lambda: oproj([2, 3], aw, T, ';nocheck'))
        if t == 6:
            guard_op(lambda: (oproj([6, 7], aw, T, ';nocheck'), wo_loads(AW, ar)))
    k(f'''
    s_add_u32 s{sJ}, s{sJ}, 1
    s_cmp_ge_u32 s{sJ}, 2
    s_cselect_b64 vcc, -1, 0
    s_cmp_lt_u32 s{sJ}, 8
    s_cbranch_scc1 {L_LOOP}
    ''')
    stamp(k, 12)
    WV = S[0]
    wo_loads(WV, vr)
    pb_write()
    k(f'''
    ds_read_b128 {vr(P, 4)}, v7 offset:{OB}
    ds_read_b128 {vr(P + 4, 4)}, v7 offset:{OB + 512}
    v_xor_b32 v7, {PAR}, v7
    s_waitcnt lgkmcnt(0)
    s_barrier
    ''')
    guard_red(red_reads)
    k('s_waitcnt vmcnt(8)')
    oproj(range(8), aw, P)
    def red_tail():
        red_calc()
        l = L('ok')
        k(f'''
        s_cmp_eq_u64 s[{sBAD}:{sBAD + 1}], 0
        s_cbranch_scc1 {l}
        v_mov_b32 v{T + 1}, 0
        v_mov_b32 v{T + 2}, 1
        ds_write_b32 v{T + 1}, v{T + 2} offset:{FLAG}
        {l}:
        ''')
    guard_red(red_tail)
    XR, GR = C, C + 4
    k(f'''
    v_and_b32 v2, 7, v0                ; t
    v_bfe_u32 v3, v0, 3, 1
    v_lshrrev_b32 v4, 4, v0            ; g
    v_lshlrev_b32 v5, 7, v2
    v_lshl_add_u32 v5, v3, 6, v5
    v_lshl_add_u32 v5, v4, 3, v5
    s_lshl_b32 s33, s{sW}, 10
    v_add_u32 v5, s33, v5
    v_lshlrev_b32 v6, 7, v3
    v_lshl_add_u32 v6, v4, 4, v6
    s_lshl_b32 s33, s{sW}, 8
    v_add_u32 v6, s33, v6
    ds_read_b64 {vr(XR, 2)}, v5 offset:{XS}
    ds_read_b64 {vr(XR + 2, 2)}, v5 offset:{XS + 32}
    ds_read_b128 {vr(GR, 4)}, v6 offset:{GA}
    ds_read_b128 {vr(GR + 4, 4)}, v6 offset:{GA + 64}
    v_mov_b32 v9, 0
    s_waitcnt lgkmcnt(0)
    s_barrier
    ds_read_b128 {vr(P, 4)}, v7 offset:{OB}
    ds_read_b128 {vr(P + 4, 4)}, v7 offset:{OB + 512}
    ds_read_b32 v9, v9 offset:{FLAG}
    v_lshlrev_b32 v5, 10, v3
    v_lshl_add_u32 v5, v4, 8, v5
    v_lshl_add_u32 v5, v2, 4, v5
    s_lshr_b32 s33, s2, 1
    s_lshl_b32 s33, s33, 14
    s_lshl_b32 s34, s{sW}, 11
    s_add_u32 s33, s33, s34
    s_and_b32 s34, s2, 1
    s_lshl_b32 s34, s34, 7
    s_add_u32 s33, s33, s34
    s_add_u32 s34, s33, {WS['X1F'][0]}
    s_add_u32 s35, s33, {WS['XN2F'][0]}
    ''')
    U = T
    stamp(k, 13)
    for d in range(4):
        unpack(k, U + 2 * d, U + 2 * d + 1, XR + d)
    k('s_waitcnt vmcnt(0) lgkmcnt(0)')
    oproj(range(8), lambda o: vr(WV + o, 4), P)
    k(f'''
    v_readfirstlane_b32 s36, v9
    s_xor_b32 s37, s{sMODE}, 1
    s_and_b32 s36, s36, s37
    s_cmp_lg_u32 s36, 0
    s_cbranch_scc1 {L_FB}
    ''')
    for i in range(8):
        k(f'v_mov_b32_dpp v{ACC + i}, v{ACC + 8 + i} quad_perm:[0,1,2,3] row_mask:0xf bank_mask:0xc')
    for i in range(8):
        k(f'v_fmac_f32 v{U + i}, v{GR + i}, v{ACC + i}')
    for d in range(4):
        k(f'v_cvt_pk_bf16_f32 v{XR + d}, v{U + 2 * d}, v{U + 2 * d + 1}')
    k(f'buffer_store_dwordx4 {vr(XR, 4)}, v5, s[{SW}:{SW + 3}], s34 offen')
    for d in range(4):
        unpack(k, U + 2 * d, U + 2 * d + 1, XR + d)
    a, b = U + 8, U + 9
    k(f'v_add_f32 v{a}, v{U}, v{U + 1}')
    k(f'v_mul_f32 v{b}, v{U}, v{U}')
    for i in range(1, 8):
        if i > 1:
            k(f'v_add_f32 v{a}, v{a}, v{U + i}')
        k(f'v_fmac_f32 v{b}, v{U + i}, v{U + i}')
    R = U + 10
    k(f'''
    v_permlane32_swap_b32 v{a}, v{b}
    v_add_f32 v{a}, v{a}, v{b}
    v_mov_b32 v{b}, v{a}
    v_permlane16_swap_b32 v{a}, v{b}
    v_add_f32 v{a}, v{a}, v{b}
    v_add_f32_dpp v{a}, v{a}, v{a} row_ror:8 row_mask:0xf bank_mask:0xf
    v_lshrrev_b32 v{b}, 5, v0
    v_lshlrev_b32 v{b}, 8, v{b}
    v_lshlrev_b32 v2, 5, v2
    s_lshl_b32 s33, s{sW}, 2
    v_add3_u32 v{b}, v{b}, v2, s33
    ds_write_b32 v{b}, v{a} offset:{LNS}
    s_waitcnt lgkmcnt(0)
    s_barrier
    ds_read_b128 {vr(ACC, 4)}, v2 offset:{LNS}
    ds_read_b128 {vr(ACC + 4, 4)}, v2 offset:{LNS + 16}
    ds_read_b128 {vr(ACC + 8, 4)}, v2 offset:{LNS + 256}
    ds_read_b128 {vr(ACC + 12, 4)}, v2 offset:{LNS + 272}
    s_waitcnt lgkmcnt(0)
    v_pk_add_f32 {vr(ACC, 2)}, {vr(ACC, 2)}, {vr(ACC + 2, 2)}
    v_pk_add_f32 {vr(ACC + 4, 2)}, {vr(ACC + 4, 2)}, {vr(ACC + 6, 2)}
    v_pk_add_f32 {vr(ACC + 8, 2)}, {vr(ACC + 8, 2)}, {vr(ACC + 10, 2)}
    v_pk_add_f32 {vr(ACC + 12, 2)}, {vr(ACC + 12, 2)}, {vr(ACC + 14, 2)}
    v_pk_add_f32 {vr(ACC, 2)}, {vr(ACC, 2)}, {vr(ACC + 4, 2)}
    v_pk_add_f32 {vr(ACC + 8, 2)}, {vr(ACC + 8, 2)}, {vr(ACC + 12, 2)}
    v_add_f32 v{ACC}, v{ACC}, v{ACC + 1}
    v_add_f32 v{ACC + 8}, v{ACC + 8}, v{ACC + 9}
    ''')
    ln_finish(k, ACC, ACC + 8, a, b)
    for i in range(8):
        k(f'v_fma_f32 v{U + i}, v{U + i}, v{a}, v{b}')
    for d in range(4):
        k(f'v_cvt_pk_bf16_f32 v{ACC + d}, v{U + 2 * d}, v{U + 2 * d + 1}')
    k(f'''
    buffer_store_dwordx4 {vr(ACC, 4)}, v5, s[{SW}:{SW + 3}], s35 offen
    ''')
    stamp_flush(k, 2, sW, 16)
    k(f'''
    {L_END}:
    s_endpgm
    ''')
    L_FBL = L('fbl')
    k(f'''
    {L_FB}:
    s_mov_b32 s{sMODE}, 1
    s_mov_b32 s{sJ}, 0
    v_add_u32 v8, {QS_}, v1
    v_and_b32 v9, 31, v0
    v_lshlrev_b32 v9, 5, v9
    v_add_u32 v9, {MT}, v9
    s_lshl_b32 s33, s{sW}, 2
    v_add_u32 v7, s33, v9
    {L_FBL}:
    ds_read_b128 {vr(Q, 4)}, v8
    v_add_u32 v8, 1024, v8
    v_mov_b32 v{T}, 0xff800000
    s_waitcnt lgkmcnt(0)
    ''')
    for t in range(8):
        k(f'v_mfma_f32_32x32x16_bf16 {vr(S[0], 16)}, {ar(AK + 4 * t, 4)}, {vr(Q, 4)}, 0')
        for i in range(8):
            k(f'v_max3_f32 v{T}, v{T}, v{S[0] + 2 * i}, v{S[0] + 2 * i + 1}')
    k(f'''
    v_mov_b32 v{T + 1}, v{T}
    v_permlane32_swap_b32 v{T}, v{T + 1}
    v_max_f32 v{T}, v{T}, v{T + 1}
    ds_write_b32 v7, v{T}
    v_add_u32 v7, 1024, v7
    s_add_u32 s{sJ}, s{sJ}, 1
    s_cmp_lt_u32 s{sJ}, 8
    s_cbranch_scc1 {L_FBL}
    v_add_u32 v8, {QS_}, v1
    ds_read_b128 {vr(Q, 4)}, v8
    s_waitcnt lgkmcnt(0)
    s_barrier
    ''')
    load_C(T + 8)
    k(f's_branch {L_MAIN}')
    return k

def entry():
    return (gen_k2(), 256, 512, LDS_BYTES)
```

```python
from common import *

LDS_BYTES = 120 * 1024

def gen_k3():
    k = Kern('k3_ffn1_kernel')
    L_END = k.newlabel('end')
    SW = 8
    sW = 3
    XB, WB, ACC, ONE = 8, 136, 192, 4
    k(f'''
    s_cmp_ge_u32 s2, 256
    s_cbranch_scc1 {L_END}
    ''')
    stamp(k, 0, True)
    stamp(k, 1)
    k(f'''
    s_load_dwordx2 s[{SW}:{SW + 1}], s[0:1], {A_WS}
    v_lshrrev_b32 v1, 6, v0
    v_and_b32 v0, 63, v0
    v_readfirstlane_b32 s{sW}, v1
    v_lshlrev_b32 v1, 4, v0            ; lane*16
    v_add_u32 v2, 0x10000, v1
    s_mov_b32 s{SW + 2}, 0x2000000
    s_mov_b32 s{SW + 3}, 0x20000
    s_and_b32 s16, s2, 7               ; xcd
    s_lshr_b32 s17, s2, 3              ; i
    ''')
    if os.environ.get('MAP') == '1':
        k('''
        s_lshl_b32 s18, s16, 1
        s_and_b32 s19, s17, 1
        s_add_u32 s18, s18, s19
        s_lshr_b32 s19, s17, 1
        ''')
    else:
        k('''
    s_lshr_b32 s18, s16, 1
    s_lshl_b32 s18, s18, 2
    s_and_b32 s19, s17, 3
    s_add_u32 s18, s18, s19            ; tb
    s_and_b32 s19, s16, 1
    s_lshl_b32 s19, s19, 3
    s_lshr_b32 s17, s17, 2
    s_add_u32 s19, s19, s17            ; fb
        ''')
    k(f'''
    s_lshl_b32 s20, s18, 3
    s_lshl_b32 s21, s{sW}, 1
    s_add_u32 s20, s20, s21            ; tt0
    s_lshl_b32 s21, s20, 14
    s_add_u32 s21, s21, {WS['XN2F'][0]}
    s_add_u32 s22, s21, 16384             ; tt1
    s_mul_i32 s23, s19, {119 * 1024}
    s_lshl_b32 s24, s{sW}, 10
    s_add_u32 s23, s23, s24
    s_add_u32 s23, s23, {WS['W1F'][0]}    ; W soffset
    s_mov_b32 m0, s24
    s_waitcnt lgkmcnt(0)
    ''')
    stamp(k, 2)
    stages = [[0, 1], [2, 3], [4, 5, 6], [7, 8, 9], [10, 11, 12], [13, 14], [15, 16]]
    seq = []
    r = 0
    stage_end = []
    for st in stages:
        need = (st[-1] + 1) * 7
        xs = [(sl - 1, tt) for sl in st if sl > 0 for tt in range(2)]
        ws_ = []
        while r * 4 < need:
            ws_.append(r)
            r += 1
        while ws_ or xs:
            if ws_:
                seq.append(('w', ws_.pop(0)))
            if xs:
                seq.append(('x', xs.pop(0)))
        stage_end.append(len(seq))
    assert r == 30 and len(seq) == 62
    xoff = 0
    for kind, a in seq:
        if kind == 'w':
            k(f'buffer_load_dwordx4 v1, s[{SW}:{SW + 3}], s23 offen lds')
            k(f's_add_u32 m0, m0, 4096')
            k(f's_add_u32 s23, s23, 4096')
        else:
            ks, tt = a
            if ks // 4 != xoff:
                assert tt == 0
                k('s_add_u32 s21, s21, 4096')
                k('s_add_u32 s22, s22, 4096')
                xoff = ks // 4
            k(f'buffer_load_dwordx4 {vr(XB + 8 * ks + 4 * tt, 4)}, v1, s[{SW}:{SW + 3}], s{21 + tt} offen offset:{(ks & 3) * 1024}')
    for d in range(4):
        k(f'v_mov_b32 v{ONE + d}, 0x3f803f80')
    def wread(sl):
        for f in range(7):
            o = (sl * 7 + f) * 1024
            a, o = ('v1', o) if o < 65536 else ('v2', o - 65536)
            k(f'ds_read_b128 {vr(WB + 28 * (sl & 1) + 4 * f, 4)}, {a} offset:{o}')
    first = {st[0]: i for i, st in enumerate(stages)}
    stamp(k, 3)
    k(f's_waitcnt vmcnt({62 - stage_end[0]})')
    stamp(k, 4)
    k('s_barrier')
    wread(0)
    for sl in range(17):
        if sl + 1 < 17:
            if sl + 1 in first:
                k(f's_waitcnt vmcnt({62 - stage_end[first[sl + 1]]})')
                k('s_barrier')
                stamp(k, 4 + first[sl + 1])
            wread(sl + 1)
            k('s_waitcnt lgkmcnt(7)')
        else:
            k('s_waitcnt lgkmcnt(0)')
        for f in range(7):
            for tt in range(2):
                D = vr(ACC + 28 * tt + 4 * f, 4)
                A = vr(WB + 28 * (sl & 1) + 4 * f, 4)
                if sl == 0:
                    k(f'v_mfma_f32_16x16x32_bf16 {D}, {A}, {vr(ONE, 4)}, 0')
                else:
                    k(f'v_mfma_f32_16x16x32_bf16 {D}, {A}, {vr(XB + 8 * (sl - 1) + 4 * tt, 4)}, {D}')
    stamp(k, 11)
    k(f'''
    s_mul_i32 s21, s20, {56 * 1024}
    s_lshr_b32 s22, s19, 1
    s_mul_i32 s22, s22, 7168
    s_add_u32 s21, s21, s22
    s_add_u32 s21, s21, {WS['HF'][0]}
    s_and_b32 s22, s19, 1
    s_lshl_b32 s23, s22, 3
    s_add_u32 s23, s23, s21
    s_add_u32 s23, s23, 6144
    s_mul_i32 s22, s22, 3072
    s_add_u32 s21, s21, s22
    ''')
    T = 8
    for tt in range(2):
        for grp in ((0, 1), (2, 3), (4, 5), (6,)):
            n = 4 * len(grp)
            a = ACC + 28 * tt + 4 * grp[0]
            t = T + 16 * ((tt * 4 + grp[0] // 2) % 4)
            for i in range(n):
                k(f'v_exp_f32 v{t + i}, -v{a + i}')
            for i in range(0, n, 2):
                k(f'v_pk_add_f32 {vr(t + i, 2)}, {vr(t + i, 2)}, 1.0 op_sel_hi:[1,0]')
            for i in range(n):
                k(f'v_rcp_f32 v{t + i}, v{t + i}')
            for i in range(0, n, 2):
                k(f'v_pk_mul_f32 {vr(t + i, 2)}, {vr(t + i, 2)}, {vr(a + i, 2)}')
            for i in range(0, n, 2):
                k(f'v_cvt_pk_bf16_f32 v{t + 8 + i // 2}, v{t + i}, v{t + i + 1}')
            if n == 8:
                k(f'buffer_store_dwordx4 {vr(t + 8, 4)}, v1, s[{SW}:{SW + 3}], s21 offen offset:{(grp[0] // 2) * 1024}')
            else:
                k(f'buffer_store_dwordx2 {vr(t + 8, 2)}, v1, s[{SW}:{SW + 3}], s23 offen')
        if tt == 0:
            k(f's_add_u32 s21, s21, {56 * 1024}')
            k(f's_add_u32 s23, s23, {56 * 1024}')
    prof_exit(k, L_END, 3, sW, 14)
    return k

def entry():
    return (gen_k3(), 256, 256, LDS_BYTES)
```

```python
from common import *

TS = 1088
LDS_BYTES = 64 * TS

def gen_k4():
    k = Kern('k4_ffn2_kernel')
    L_END = k.newlabel('end')
    SW, SO = 8, 12
    sW = 3
    ACC, XR, GR = 8, 72, 80
    k(f'''
    s_cmp_ge_u32 s2, 256
    s_cbranch_scc1 {L_END}
    ''')
    stamp(k, 0, True)
    stamp(k, 1)
    k(f'''
    s_load_dwordx2 s[{SW}:{SW + 1}], s[0:1], {A_WS}
    s_load_dwordx2 s[{SO}:{SO + 1}], s[0:1], {A_OUT}
    v_lshrrev_b32 v1, 6, v0
    v_and_b32 v0, 63, v0
    v_readfirstlane_b32 s{sW}, v1
    v_lshlrev_b32 v1, 4, v0            ; lane*16
    s_mov_b32 s{SW + 2}, 0x2000000
    s_mov_b32 s{SW + 3}, 0x20000
    s_mov_b32 s{SO + 2}, {2048 * 1024}
    s_mov_b32 s{SO + 3}, 0x20000
    s_and_b32 s16, s2, 7               ; xcd
    s_lshr_b32 s17, s2, 3              ; i
    ''')
    if os.environ.get('MAP') == '1':
        k('''
        s_lshl_b32 s18, s16, 2
        s_and_b32 s19, s17, 3
        s_add_u32 s18, s18, s19
        s_lshr_b32 s19, s17, 2
        ''')
    else:
        k('''
    s_lshr_b32 s18, s16, 1
    s_lshl_b32 s18, s18, 3
    s_and_b32 s19, s17, 7
    s_add_u32 s18, s18, s19            ; tb (0..31)
    s_and_b32 s19, s16, 1
    s_lshl_b32 s19, s19, 2
    s_lshr_b32 s17, s17, 3
    s_add_u32 s19, s19, s17            ; cb (0..7)
        ''')
    k(f'''
    s_mul_i32 s20, s18, {4 * 56 * 1024}
    s_mul_i32 s24, s{sW}, {14 * 1024}
    s_add_u32 s20, s20, s24
    s_add_u32 s20, s20, {WS['HF'][0]}
    s_add_u32 s21, s20, {56 * 1024}
    s_add_u32 s22, s21, {56 * 1024}
    s_add_u32 s23, s22, {56 * 1024}
    s_mul_i32 s24, s{sW}, {14 * 32 * 1024}
    s_lshl_b32 s25, s19, 12
    s_add_u32 s24, s24, s25
    s_add_u32 s24, s24, {WS['W2F'][0]}
    v_lshrrev_b32 v2, 2, v0
    v_and_b32 v3, 3, v0
    v_lshrrev_b32 v4, 1, v3
    v_lshlrev_b32 v4, 10, v4
    v_lshl_add_u32 v4, v2, 4, v4
    v_and_b32 v5, 1, v3
    v_lshl_add_u32 v4, v5, 3, v4       ; x1 voffset
    v_lshlrev_b32 v5, 6, v3
    s_lshl_b32 s26, s18, 2
    s_add_u32 s26, s26, s{sW}          ; tt
    s_lshl_b32 s26, s26, 14
    s_lshl_b32 s27, s19, 11
    s_add_u32 s27, s27, s26
    s_add_u32 s27, s27, {WS['X1F'][0]}
    s_lshl_b32 s28, s19, 8
    s_add_u32 s28, s28, {WS['MOD'][0] + 6144}
    s_lshl_b32 s29, s19, 7
    s_add_u32 s29, s29, s26
    s_waitcnt lgkmcnt(0)
    ''')
    def loads(st):
        b = 32 * (st % 7)
        for i in range(4):
            k(f'buffer_load_dwordx4 {ar(b + 4 * i, 4)}, v1, s[{SW}:{SW + 3}], s{20 + i} offen offset:{(st & 3) * 1024}')
            k(f'buffer_load_dwordx4 {ar(b + 16 + 4 * i, 4)}, v1, s[{SW}:{SW + 3}], s24 offen offset:{i * 1024}')
        k('s_add_u32 s24, s24, 32768')
        if st & 3 == 3:
            for i in range(4):
                k(f's_add_u32 s{20 + i}, s{20 + i}, 4096')
    stamp(k, 2)
    for st in range(7):
        loads(st)
    stamp(k, 3)
    for st in range(14):
        b = 32 * (st % 7)
        if st < 7:
            k('s_waitcnt vmcnt(48)')
        elif st == 7:
            k('s_waitcnt vmcnt(48)')
        else:
            k(f's_waitcnt vmcnt({8 * (13 - st) + 8})')
        if st % 2 == 0:
            stamp(k, 4 + st // 2)
        for i in range(4):
            for c in range(4):
                D = vr(ACC + 16 * i + 4 * c, 4)
                k(f'v_mfma_f32_16x16x32_bf16 {D}, {ar(b + 16 + 4 * c, 4)}, {ar(b + 4 * i, 4)}, {D if st else 0}')
        if st < 7:
            loads(st + 7)
        if st == 7:
            for g in range(4):
                k(f'buffer_load_dwordx2 {vr(XR + 2 * g, 2)}, v4, s[{SW}:{SW + 3}], s27 offen offset:{g * 256}')
                k(f'buffer_load_dwordx4 {vr(GR + 4 * g, 4)}, v5, s[{SW}:{SW + 3}], s28 offen offset:{g * 16}')
    k(f'''
    s_mul_i32 s30, s{sW}, {16 * TS}
    v_add_u32 v6, s30, v1
    v_mul_u32_u24 v7, {TS}, v3
    v_lshl_add_u32 v7, v2, 4, v7
    s_mul_i32 s30, s{sW}, {4 * TS}
    v_add_u32 v7, s30, v7
    v_lshlrev_b32 v4, 10, v2
    v_lshl_add_u32 v4, v3, 5, v4
    ''')
    stamp(k, 11)
    for t in range(16):
        k(f'ds_write_b128 v6, {vr(ACC + 4 * t, 4)} offset:{t * TS}')
    k('s_waitcnt vmcnt(0)')
    U = 96
    for i in range(16):
        k(f'v_mul_f32 v{GR + i}, {f32bits(math.log(2.0))}, v{GR + i}')
    for d in range(8):
        unpack(k, U + 2 * d, U + 2 * d + 1, XR + d)
    k('s_waitcnt lgkmcnt(0)')
    k('s_barrier')
    R = ACC
    stamp(k, 12)
    for g in range(4):
        for p in range(4):
            k(f'ds_read_b128 {vr(R + 16 * g + 4 * p, 4)}, v7 offset:{p * 16 * TS + g * 256}')
    for g in range(4):
        r = R + 16 * g
        k(f's_waitcnt lgkmcnt({12 - 4 * g})')
        for h in (0, 2):
            k(f'v_pk_add_f32 {vr(r + h, 2)}, {vr(r + h, 2)}, {vr(r + 4 + h, 2)}')
            k(f'v_pk_add_f32 {vr(r + 8 + h, 2)}, {vr(r + 8 + h, 2)}, {vr(r + 12 + h, 2)}')
        for h in (0, 2):
            k(f'v_pk_add_f32 {vr(r + h, 2)}, {vr(r + h, 2)}, {vr(r + 8 + h, 2)}')
        for h in (0, 2):
            k(f'v_pk_fma_f32 {vr(r + h, 2)}, {vr(r + h, 2)}, {vr(GR + 4 * g + h, 2)}, {vr(U + 4 * g + h, 2)}')
        for h in (0, 2):
            k(f'v_cvt_pk_bf16_f32 v{XR + 2 * g + h // 2}, v{r + h}, v{r + h + 1}')
        if g & 1:
            k(f'buffer_store_dwordx4 {vr(XR + 2 * g - 2, 4)}, v4, s[{SO}:{SO + 3}], s29 offen offset:{(g // 2) * 16}')
    prof_exit(k, L_END, 4, sW, 15)
    return k

def entry():
    return (gen_k4(), 256, 256, LDS_BYTES)
```

```python
from common import *

PAR = 32768
PBO, PBL, OB = 0, 16384, 17408
XS, GA, FLAG, LNS = 20480, 28672, 30720, 30976
MT, QS_ = PAR + 20480, 61440
DUMMY = 61440 + 8192 + 1024
LDS_BYTES = DUMMY + 2048
PRIO = os.environ.get('K2PRIO', '1A,5A,7A,0C')
PRIO0 = os.environ.get('K2PRIO0', '0A,5A,7A,9A')
TB = int(os.environ.get('K2TB', '1'))
KVD = int(os.environ.get('K2KVD', '3'))
ONES = os.environ.get('K2ONES', '0x110000')
XP = int(os.environ.get('K2X', '0'))

def gen_k2():
    k = Kern('k2_attn_kernel')
    L = lambda n: k.newlabel(n)
    L_END, L_FB = L('end'), L('fb')
    S = [10, 26]
    P, Q, ACC, T, OBF, VM = 42, 50, 54, 70, 94, 102
    AK, AV, AO, AW = 0, 32, 96, 112
    SW, SX = 8, 12
    sW, sJ, sWO0, sWO1, sLO, sRNG = 3, 16, 17, 18, 19, 20
    sMASK, sBAD, sTMP = 22, 24, 26
    sG, sG8, sKV = 21, 28, 36
    k(f'''
    s_cmp_ge_u32 s2, 256
    s_cbranch_scc1 {L_END}
    ''')
    stamp(k, 0, True)
    stamp(k, 1)
    k(f'''
    s_load_dwordx2 s[{SW}:{SW + 1}], s[0:1], {A_WS}
    s_load_dwordx2 s[{SX}:{SX + 1}], s[0:1], {A_X}
    v_lshrrev_b32 v1, 6, v0
    v_and_b32 v0, 63, v0               ; lane
    v_readfirstlane_b32 s{sW}, v1
    v_lshlrev_b32 v1, 4, v0            ; lane*16
    s_mov_b32 s{SW + 2}, 0x2000000
    s_mov_b32 s{SW + 3}, 0x20000
    s_mov_b32 s{SX + 2}, {2048 * 1024}
    s_mov_b32 s{SX + 3}, 0x20000
    s_mov_b32 s{sMASK}, 0xffff
    s_mov_b32 s{sMASK + 1}, 0xffff
    s_mov_b32 s{sLO}, {f32bits(2.0 ** -90)}
    s_mov_b32 s{sRNG}, {130 << 23}
    s_mov_b32 s{sG}, s2
    s_lshl_b32 s{sG8}, s{sG}, 13
    s_cmp_lt_u32 s{sW}, 4
    s_cselect_b64 vcc, -1, 0
    ''')

    def body(mode):
        L_LOOP, L_W7, L_W7R = [[L(n), L(n)] for n in ('loop', 'w7', 'w7r')]
        k(f'''
        v_mov_b32 v{T}, 0
        v_mov_b32 v{T + 1}, 0
        v_mov_b32 v{T + 2}, 0
        v_mov_b32 v{T + 3}, 0x3afe3f80     ; 1.0, 127 * 2^-16
        v_mov_b32 v{T + 4}, 0
        v_mov_b32 v{T + 5}, 0
        v_mov_b32 v{T + 6}, 0
        v_mov_b32 v{T + 7}, 0
        s_mov_b64 exec, {ONES}
        v_mov_b32 v{T + 7}, 0x3f803f80
        s_mov_b64 exec, -1
        v_lshrrev_b32 v5, 5, v0            ; hh
        v_and_b32 v9, 15, v0
        v_lshlrev_b32 v9, 4, v9
        v_lshl_add_u32 v9, v5, 8, v9       ; V voffset
        ''')
        for i in range(4):
            k(f'v_mfma_f32_32x32x16_bf16 {ar(AV + 16 * i, 16)}, {vr(T, 4)}, {vr(T + 4, 4)}, 0')
        k(f'v_mov_b32 v{T + 7}, 0')
        for i in range(2):
            k(f'v_mfma_f32_32x32x16_bf16 {ar(AW + 16 * i, 16)}, {vr(T + 4, 4)}, {vr(T + 4, 4)}, 0')
        k(f'v_mfma_f32_32x32x16_bf16 {vr(ACC, 16)}, {vr(T + 4, 4)}, {vr(T + 4, 4)}, 0')
        k(f'''
        ds_write_b128 v1, {vr(T + 4, 4)} offset:{PAR + OB}
        ds_write_b32 v{T + 4}, v{T + 4} offset:{FLAG}
        s_add_u32 s32, s{sG8}, {WS['QF'][0]}
        s_lshl_b32 s33, s{sW}, 10          ; w*1024
        s_add_u32 s34, s32, s33
        s_add_u32 s35, s33, {QS_}
        s_mov_b32 m0, s35
        s_lshl_b32 s{sKV}, s{sW}, 14
        s_add_u32 s{sKV}, s{sKV}, {WS['KVF'][0]}
        s_lshl_b32 s{sWO0}, s{sW}, 12
        s_add_u32 s{sWO0}, s{sWO0}, {WS['WOF'][0]}
        s_add_u32 s{sWO1}, s{sWO0}, 32768
        s_lshl_b32 s35, s{sW}, 11
        v_add_u32 v2, s35, v1
        v_and_b32 v3, 31, v0
        v_lshlrev_b32 v3, 5, v3
        s_lshl_b32 s35, s{sW}, 2
        v_add_u32 v3, s35, v3
        s_lshl_b32 s35, s{sW}, 9
        v_lshl_add_u32 v4, v0, 3, s35
        v_lshrrev_b32 v5, 1, v0            ; n
        v_lshrrev_b32 v6, 4, v5            ; ksl
        v_lshlrev_b32 v6, 9, v6
        v_and_b32 v7, 7, v5
        v_lshl_add_u32 v6, v7, 4, v6
        v_bfe_u32 v7, v5, 3, 1
        v_lshl_add_u32 v6, v7, 3, v6
        v_and_b32 v7, 1, v0
        v_lshl_add_u32 v6, v7, 2, v6
        s_lshl_b32 s35, s{sW}, 7
        v_add_u32 v6, s35, v6
        v_lshlrev_b32 v5, 5, v5
        v_lshrrev_b32 v7, 4, v0
        v_lshlrev_b32 v7, 3, v7
        v_and_b32 v8, 7, v0
        v_add_u32 v7, v7, v8
        v_lshlrev_b32 v7, 4, v7
        v_add_u32 v7, {PAR}, v7
        v_add_u32 v8, {QS_ + 2048}, v1     ; Q read
        s_mov_b32 s{sJ}, 1
        s_mov_b64 s[{sBAD}:{sBAD + 1}], 0
        ''')
        if mode:
            k(f'''
            v_and_b32 v{VM + 2}, 31, v0
            v_lshlrev_b32 v{VM + 2}, 5, v{VM + 2}
            v_add_u32 v{VM + 2}, {MT}, v{VM + 2}
            ''')
        k('s_waitcnt lgkmcnt(0)')
        if not mode:
            stamp(k, 2)
        vm = []
        kvo = [0]
        def setkv(t):
            if t != kvo[0]:
                k(f's_add_u32 s{sKV}, s{sKV}, {2048 * (t - kvo[0])}')
                kvo[0] = t
        def ldK(t, base):
            k(f'buffer_load_dwordx4 {ar(AK + 4 * t, 4)}, v1, s[{SW}:{SW + 3}], s{sKV} offen offset:{2048 * (t - base)}')
            vm.append(('K', t))
        def ldKV(t):
            setkv(t)
            k(f's_mov_b64 exec, s[{sMASK}:{sMASK + 1}]')
            k(f'buffer_load_dwordx4 {ar(AV + 8 * t, 4)}, v9, s[{SW}:{SW + 3}], s{sKV} offen offset:1024')
            k(f'buffer_load_dwordx4 {ar(AV + 8 * t + 4, 4)}, v9, s[{SW}:{SW + 3}], s{sKV} offen offset:1536')
            k(f's_mov_b64 exec, -1')
            vm.extend([('Va', t), ('Vb', t)])
            if t < 7:
                ldK(t + 1, t)
        def need(*names):
            n = min(len(vm) - 1 - vm.index(x) for x in names)
            k(f's_waitcnt vmcnt({n})')
        def load_max(dst):
            tmp = T + 8
            k(f'''
            ds_read_b128 {vr(tmp, 4)}, v{VM + 2}
            ds_read_b128 {vr(tmp + 4, 4)}, v{VM + 2} offset:16
            v_add_u32 v{VM + 2}, 1024, v{VM + 2}
            s_waitcnt lgkmcnt(0)
            v_max3_f32 v{tmp}, v{tmp}, v{tmp + 1}, v{tmp + 2}
            v_max3_f32 v{tmp + 3}, v{tmp + 3}, v{tmp + 4}, v{tmp + 5}
            v_max3_f32 v{tmp}, v{tmp}, v{tmp + 6}, v{tmp + 7}
            v_max_f32 v{dst}, v{tmp}, v{tmp + 3}
            ''')
        def ex(X, a, b, m=VM):
            for i in range(a, b):
                if mode:
                    k(f'v_sub_f32 v{X + i}, v{X + i}, v{m}')
                k(f'v_exp_f32 v{X + i}, v{X + i}')
        def cv(X, a, b):
            for i in range(a, b):
                k(f'v_cvt_pk_bf16_f32 v{P + i}, v{X + 2 * i}, v{X + 2 * i + 1}')
        def pb_write():
            k(f'''
            ds_write_b128 v2, {ar(AO, 4)} offset:{PBO}
            ds_write_b128 v2, {ar(AO + 4, 4)} offset:{PBO + 1024}
            ds_write_b32 v3, a{AO + 8} offset:{PBL}
            ''')
        def red_reads(a=0, b=10):
            for p in range(a, b):
                if p < 8:
                    k(f'ds_read_b64 {vr(T + 2 * p, 2)}, v4 offset:{PBO + p * 2048}')
                else:
                    k(f'ds_read_b128 {vr(T + 16 + 4 * (p - 8), 4)}, v5 offset:{PBL + 16 * (p - 8)}')
        def ob_reads(B):
            k(f'ds_read_b128 {vr(B, 4)}, v7 offset:{OB}')
            k(f'ds_read_b128 {vr(B + 4, 4)}, v7 offset:{OB + 512}')
        def red_calc(toggle, part=3):
            pk = lambda a, b: k(f'v_pk_add_f32 {vr(T + a, 2)}, {vr(T + a, 2)}, {vr(T + b, 2)}')
            if part & 1:
                pk(16, 18); pk(20, 22); pk(0, 2); pk(16, 20); pk(4, 6); pk(8, 10)
                k(f'v_add_f32 v{T + 16}, v{T + 16}, v{T + 17}')
                pk(12, 14)
                k(f'v_rcp_f32 v{T + 17}, v{T + 16}')
            if not part & 2:
                return
            pk(0, 4); pk(8, 12)
            if not mode:
                k(f'v_subrev_u32 v{T + 18}, s{sLO}, v{T + 16}')
            pk(0, 8)
            if not mode:
                k(f'v_cmp_lt_u32 s[{sTMP}:{sTMP + 1}], s{sRNG}, v{T + 18}')
            k(f'v_pk_mul_f32 {vr(T, 2)}, {vr(T, 2)}, {vr(T + 16, 2)} op_sel:[0,1] op_sel_hi:[1,1]')
            if toggle:
                k(f'v_xor_b32 v4, {PAR}, v4')
                k(f'v_xor_b32 v5, {PAR}, v5')
            k(f'v_cvt_pk_bf16_f32 v{T}, v{T}, v{T + 1}')
            if not mode:
                k(f's_or_b64 s[{sBAD}:{sBAD + 1}], s[{sBAD}:{sBAD + 1}], s[{sTMP}:{sTMP + 1}]')
            k(f'ds_write_b32 v6, v{T} offset:{OB}')
            if toggle:
                k(f'v_xor_b32 v6, {PAR}, v6')
        def guard_red(fn):
            l = L('nr')
            k(f's_cbranch_vccz {l}')
            fn()
            k(f'{l}:')
        def opm(i, wreg, B, nc=False):
            ksl, c = divmod(i, 4)
            k(f'v_mfma_f32_16x16x32_bf16 {vr(ACC + 4 * c, 4)}, {wreg(4 * i)}, {vr(B + 4 * ksl, 4)}, {vr(ACC + 4 * c, 4)}' + (' ;nocheck' if nc else ''))
        def wo_load(i, dst):
            ksl, c = divmod(i, 4)
            k(f'buffer_load_dwordx4 {dst}, v1, s[{SW}:{SW + 3}], s{sWO1 if ksl else sWO0} offen offset:{c * 1024}')
        aw = lambda o: ar(AW + o, 4)
        def op_step(i):
            if XP & 1:
                return
            k('s_waitcnt vmcnt(7)')
            opm(i, aw, OBF)
            wo_load(i, aw(4 * i))

        def rnd(first, red=False):
            RR = {(2, 'B'): (0, 1), (2, 'C'): (1, 2), (2, 'D'): (2, 3), (2, 'E'): (3, 4),
                  (3, 'B'): (4, 5), (3, 'C'): (5, 6), (3, 'E'): (6, 7), (4, 'B'): (7, 8), (4, 'C'): (8, 9), (4, 'E'): (9, 10)}
            def slot(t, s_):
                slot2(t, s_)
                pp = (PRIO0 if first else PRIO).split(',')
                if f'{t}{s_}' in pp:
                    k(f's_setprio {3 - pp.index(f"{t}{s_}")}')
            def slot2(t, s_):
                if first:
                    return
                if red and (t, s_) in RR:
                    red_reads(*RR[(t, s_)])
                if red and (t, s_) == (5, 'B'):
                    k('s_waitcnt lgkmcnt(0)')
                    red_calc(True, 1)
                if red and (t, s_) == (5, 'E'):
                    red_calc(True, 2)
                if (t, s_) == (TB, 'A'):
                    k('s_waitcnt lgkmcnt(0)')
                    if not XP & 2:
                        k('s_barrier')
                    ob_reads(OBF)
                    k(f'v_xor_b32 v7, {PAR}, v7')
                if (t, s_) == (3, 'A'):
                    k(f's_waitcnt lgkmcnt({4 if red else 0})')
                if 3 <= t <= 6 and s_ in 'AD':
                    op_step(2 * (t - 3) + (s_ == 'D'))
                if (t, s_) == (7, 'A'):
                    k(f'''
                    s_add_u32 s{sWO0}, s{sWO0}, 65536
                    s_add_u32 s{sWO1}, s{sWO1}, 65536
                    s_cmp_eq_u32 s{sJ}, 7
                    s_cbranch_scc1 {L_W7[red]}
                    {L_W7R[red]}:
                    ''')
            for t in range(8):
                X, Y = S[t & 1], S[(t + 1) & 1]
                ex(X, 2, 5)
                slot(t, 'A')
                if not first:
                    pass
                elif t < 8 - KVD:
                    ldKV(t + KVD)
                if first and t == 6:
                    k(f'''
                    s_add_u32 s35, s33, {XS}
                    s_mov_b32 m0, s35
                    s_lshl_b32 s35, s{sW}, 7
                    s_add_u32 s35, s35, s{sG8}
                    v_lshrrev_b32 v9, 3, v0
                    v_lshlrev_b32 v9, 10, v9
                    v_and_b32 v{T}, 7, v0
                    v_lshl_add_u32 v9, v{T}, 4, v9
                    buffer_load_dwordx4 v9, s[{SX}:{SX + 3}], s35 offen lds
                    s_lshl_b32 s34, s{sW}, 8
                    s_add_u32 s35, s34, {GA}
                    s_mov_b32 m0, s35
                    s_add_u32 s34, s34, {WS['MOD'][0]}
                    v_lshlrev_b32 v9, 2, v0
                    buffer_load_dword v9, s[{SW}:{SW + 3}], s34 offen lds
                    ''')
                    vm.extend([('XS', 0), ('GA', 0)])
                ex(X, 5, 8)
                if t == 7:
                    if mode:
                        load_max(VM + 1)
                    k('s_waitcnt lgkmcnt(0)')
                elif first:
                    need(('K', t + 1))
                k(f'v_mfma_f32_32x32x16_bf16 {vr(Y, 16)}, {ar(AK + 4 * ((t + 1) & 7), 4)}, {vr(Q, 4)}, 0')
                slot(t, 'B')
                if t == 6 and not first:
                    k(f'ds_read_b128 {vr(Q, 4)}, v8')
                    k(f'v_add_u32 v8, 1024, v8')
                if first and t == 0:
                    k(f'buffer_load_dwordx4 v1, s[{SW}:{SW + 3}], s34 offen lds')
                    k(f'buffer_load_dwordx4 {vr(OBF, 4)}, v1, s[{SW}:{SW + 3}], s32 offen offset:1024')
                    vm.extend([('Q', 0), ('Q1', 0)])
                cv(X, 0, 4)
                if first and t == 6:
                    k(f'v_pk_mov_b32 {vr(Q, 2)}, {vr(OBF, 2)}, {vr(OBF, 2)} op_sel:[0,1]')
                    k(f'v_pk_mov_b32 {vr(Q + 2, 2)}, {vr(OBF + 2, 2)}, {vr(OBF + 2, 2)} op_sel:[0,1]')
                ex(X, 8, 12)
                if t == 0 and not first:
                    pb_write()
                if first:
                    need(('Va', t), ('Vb', t))
                Cin = '0' if t == 0 else ar(AO, 16)
                k(f'v_mfma_f32_32x32x16_bf16 {ar(AO, 16)}, {ar(AV + 8 * t, 4)}, {vr(P, 4)}, {Cin} ;nocheck')
                if t == 0 and not first:
                    k(f'v_xor_b32 v2, {PAR}, v2')
                    k(f'v_xor_b32 v3, {PAR}, v3')
                slot(t, 'C')
                ex(X, 12, 14)
                cv(X, 4, 6)
                slot(t, 'D')
                ex(X, 14, 16)
                cv(X, 6, 8)
                if t == 7 and mode:
                    k(f'v_mov_b32 v{VM}, v{VM + 1}')
                ex(Y, 0, 2)
                k(f'v_mfma_f32_32x32x16_bf16 {ar(AO, 16)}, {ar(AV + 8 * t + 4, 4)}, {vr(P + 4, 4)}, {ar(AO, 16)} ;nocheck')
                slot(t, 'E')

        k(f'buffer_load_dwordx4 {vr(Q, 4)}, v1, s[{SW}:{SW + 3}], s32 offen')
        vm.append(('Q0', 0))
        ldK(0, 0)
        for t in range(KVD):
            ldKV(t)
        if mode:
            load_max(VM)
        need(('K', 0))
        if not mode:
            stamp(k, 3)
        k(f'v_mfma_f32_32x32x16_bf16 {vr(S[0], 16)}, {ar(AK, 4)}, {vr(Q, 4)}, 0')
        ex(S[0], 0, 2)
        rnd(True)
        L_TAIL = L('tail')
        k(f's_cbranch_vccz {L_LOOP[0]}')
        for red in (1, 0):
            k(f'{L_LOOP[red]}:')
            if PROF and not mode:
                k('s_memtime s[62:63]')
                k('s_waitcnt lgkmcnt(0)')
                for i in range(6):
                    k(f's_mov_b32 s{68 + i}, s{69 + i}')
                k('s_mov_b32 s74, s62')
            rnd(False, red)
            k(f'''
            s_add_u32 s{sJ}, s{sJ}, 1
            s_cmp_lt_u32 s{sJ}, 8
            s_cbranch_scc1 {L_LOOP[red]}
            ''')
            if red:
                k(f's_branch {L_TAIL}')
        k(f'{L_TAIL}:')
        if not mode:
            stamp(k, 11)
        XR, GR = S[0], S[0] + 4
        k(f'''
        v_and_b32 v8, 7, v0                ; t
        v_bfe_u32 v9, v0, 3, 1
        v_lshrrev_b32 v{Q}, 4, v0          ; g
        v_lshlrev_b32 v{Q + 1}, 7, v8
        v_lshl_add_u32 v{Q + 1}, v9, 6, v{Q + 1}
        v_lshl_add_u32 v{Q + 1}, v{Q}, 3, v{Q + 1}
        v_add_u32 v{Q + 1}, s33, v{Q + 1}
        v_lshlrev_b32 v{Q + 2}, 7, v9
        v_lshl_add_u32 v{Q + 2}, v{Q}, 4, v{Q + 2}
        s_lshl_b32 s35, s{sW}, 8
        v_add_u32 v{Q + 2}, s35, v{Q + 2}
        ''')
        pb_write()
        k(f'''
        ds_read_b64 {vr(XR, 2)}, v{Q + 1} offset:{XS}
        ds_read_b64 {vr(XR + 2, 2)}, v{Q + 1} offset:{XS + 32}
        ds_read_b128 {vr(GR, 4)}, v{Q + 2} offset:{GA}
        ds_read_b128 {vr(GR + 4, 4)}, v{Q + 2} offset:{GA + 64}
        v_lshlrev_b32 v2, 10, v9
        v_lshl_add_u32 v2, v{Q}, 8, v2
        v_lshl_add_u32 v2, v8, 4, v2
        s_lshr_b32 s33, s{sG}, 1
        s_lshl_b32 s33, s33, 14
        s_lshl_b32 s34, s{sW}, 11
        s_add_u32 s33, s33, s34
        s_and_b32 s34, s{sG}, 1
        s_lshl_b32 s34, s34, 7
        s_add_u32 s33, s33, s34
        s_add_u32 s34, s33, {WS['X1F'][0]}
        s_add_u32 s35, s33, {WS['XN2F'][0]}
        s_waitcnt lgkmcnt(0)
        s_barrier
        ''')
        guard_red(red_reads)
        ob_reads(OBF)
        k(f'v_xor_b32 v7, {PAR}, v7')
        U = S[1]
        for d in range(4):
            unpack(k, U + 2 * d, U + 2 * d + 1, XR + d)
        def red_tail():
            k('s_waitcnt lgkmcnt(2)')
            red_calc(False)
            if mode:
                return
            l = L('ok')
            k(f'''
            s_cmp_eq_u64 s[{sBAD}:{sBAD + 1}], 0
            s_cbranch_scc1 {l}
            v_mov_b32 v{T + 1}, 0
            v_mov_b32 v{T + 2}, 1
            ds_write_b32 v{T + 1}, v{T + 2} offset:{FLAG}
            {l}:
            ''')
        guard_red(red_tail)
        k('s_waitcnt vmcnt(8) lgkmcnt(0)')
        k('s_barrier')
        ob_reads(P)
        k(f'v_mov_b32 v9, 0')
        k(f'ds_read_b32 v9, v9 offset:{FLAG}')
        for i in range(8):
            opm(i, aw, OBF, True)
        if not mode:
            stamp(k, 12)
        k('s_waitcnt vmcnt(0) lgkmcnt(0)')
        for i in range(8):
            opm(i, lambda o: ar(AV + o, 4), P)
        if not mode:
            k(f'''
            v_readfirstlane_b32 s36, v9
            s_cmp_lg_u32 s36, 0
            s_cbranch_scc1 {L_FB}
            ''')
        for i in range(8):
            k(f'v_mov_b32_dpp v{ACC + i}, v{ACC + 8 + i} quad_perm:[0,1,2,3] row_mask:0xf bank_mask:0xc')
        for i in range(8):
            k(f'v_fmac_f32 v{U + i}, v{GR + i}, v{ACC + i}')
        for d in range(4):
            k(f'v_cvt_pk_bf16_f32 v{XR + d}, v{U + 2 * d}, v{U + 2 * d + 1}')
        k(f'buffer_store_dwordx4 {vr(XR, 4)}, v2, s[{SW}:{SW + 3}], s34 offen')
        for d in range(4):
            unpack(k, U + 2 * d, U + 2 * d + 1, XR + d)
        a, b = U + 8, U + 9
        k(f'v_add_f32 v{a}, v{U}, v{U + 1}')
        k(f'v_mul_f32 v{b}, v{U}, v{U}')
        for i in range(1, 8):
            if i > 1:
                k(f'v_add_f32 v{a}, v{a}, v{U + i}')
            k(f'v_fmac_f32 v{b}, v{U + i}, v{U + i}')
        k(f'''
        v_permlane32_swap_b32 v{a}, v{b}
        v_add_f32 v{a}, v{a}, v{b}
        v_mov_b32 v{b}, v{a}
        v_permlane16_swap_b32 v{a}, v{b}
        v_add_f32 v{a}, v{a}, v{b}
        v_add_f32_dpp v{a}, v{a}, v{a} row_ror:8 row_mask:0xf bank_mask:0xf
        v_lshrrev_b32 v{b}, 5, v0
        v_lshlrev_b32 v{b}, 8, v{b}
        v_lshlrev_b32 v8, 5, v8
        s_lshl_b32 s33, s{sW}, 2
        v_add3_u32 v{b}, v{b}, v8, s33
        ds_write_b32 v{b}, v{a} offset:{LNS}
        s_waitcnt lgkmcnt(0)
        s_barrier
        ds_read_b128 {vr(ACC, 4)}, v8 offset:{LNS}
        ds_read_b128 {vr(ACC + 4, 4)}, v8 offset:{LNS + 16}
        ds_read_b128 {vr(ACC + 8, 4)}, v8 offset:{LNS + 256}
        ds_read_b128 {vr(ACC + 12, 4)}, v8 offset:{LNS + 272}
        s_waitcnt lgkmcnt(0)
        v_pk_add_f32 {vr(ACC, 2)}, {vr(ACC, 2)}, {vr(ACC + 2, 2)}
        v_pk_add_f32 {vr(ACC + 4, 2)}, {vr(ACC + 4, 2)}, {vr(ACC + 6, 2)}
        v_pk_add_f32 {vr(ACC + 8, 2)}, {vr(ACC + 8, 2)}, {vr(ACC + 10, 2)}
        v_pk_add_f32 {vr(ACC + 12, 2)}, {vr(ACC + 12, 2)}, {vr(ACC + 14, 2)}
        v_pk_add_f32 {vr(ACC, 2)}, {vr(ACC, 2)}, {vr(ACC + 4, 2)}
        v_pk_add_f32 {vr(ACC + 8, 2)}, {vr(ACC + 8, 2)}, {vr(ACC + 12, 2)}
        v_add_f32 v{ACC}, v{ACC}, v{ACC + 1}
        v_add_f32 v{ACC + 8}, v{ACC + 8}, v{ACC + 9}
        ''')
        ln_finish(k, ACC, ACC + 8, a, b)
        for i in range(8):
            k(f'v_fma_f32 v{U + i}, v{U + i}, v{a}, v{b}')
        for d in range(4):
            k(f'v_cvt_pk_bf16_f32 v{ACC + d}, v{U + 2 * d}, v{U + 2 * d + 1}')
        k(f'''
        buffer_store_dwordx4 {vr(ACC, 4)}, v2, s[{SW}:{SW + 3}], s35 offen
        ''')
        if not mode:
            stamp_flush(k, 2, sW, 15)
            k(f'{L_END}:')
        k('s_endpgm')
        for red in (0, 1):
            k(f'{L_W7[red]}:')
            for i in range(8):
                wo_load(i, ar(AV + 4 * i, 4))
            k(f's_branch {L_W7R[red]}')

    body(0)
    L_FBL = L('fbl')
    k(f'''
    {L_FB}:
    s_mov_b32 s{sJ}, 0
    v_add_u32 v8, {QS_}, v1
    v_and_b32 v9, 31, v0
    v_lshlrev_b32 v9, 5, v9
    v_add_u32 v9, {MT}, v9
    s_lshl_b32 s33, s{sW}, 2
    v_add_u32 v7, s33, v9
    {L_FBL}:
    ds_read_b128 {vr(Q, 4)}, v8
    v_add_u32 v8, 1024, v8
    v_mov_b32 v{T}, 0xff800000
    s_waitcnt lgkmcnt(0)
    ''')
    for t in range(8):
        k(f'v_mfma_f32_32x32x16_bf16 {vr(S[0], 16)}, {ar(AK + 4 * t, 4)}, {vr(Q, 4)}, 0')
        for i in range(8):
            k(f'v_max3_f32 v{T}, v{T}, v{S[0] + 2 * i}, v{S[0] + 2 * i + 1}')
    k(f'''
    v_mov_b32 v{T + 1}, v{T}
    v_permlane32_swap_b32 v{T}, v{T + 1}
    v_max_f32 v{T}, v{T}, v{T + 1}
    ds_write_b32 v7, v{T}
    v_add_u32 v7, 1024, v7
    s_add_u32 s{sJ}, s{sJ}, 1
    s_cmp_lt_u32 s{sJ}, 8
    s_cbranch_scc1 {L_FBL}
    s_waitcnt lgkmcnt(0)
    s_barrier
    ''')
    body(1)
    return k

def entry():
    return (gen_k2(), 256, 512, LDS_BYTES)
```

```python
from common import *

def gen_k0():
    k = Kern('k0_prep_kernel')
    L_LN, L_END, L_G0, L_AFTERDMA, L_G1, L_SA, L_NOKV, L_NOKV2, L_KVDMA = [k.newlabel(x) for x in
        ('ln', 'end', 'g0', 'afterdma', 'g1', 'sa', 'nokv', 'nokv2', 'kvdma')]
    PART, SV, WT, KVT = 0, 2048, 4096, 4096 + 16384
    k(f'''
    s_cmp_ge_u32 s2, 256
    s_cbranch_scc1 {L_END}
    ''')
    stamp(k, 0, True)
    stamp(k, 1)
    k(f'''
    s_load_dwordx2 s[4:5], s[0:1], {A_WS}
    v_lshrrev_b32 v1, 6, v0
    v_and_b32 v2, 63, v0
    v_readfirstlane_b32 s3, v1
    ''')
    if os.environ.get('CPF', '1') == '1':
        lp, ls = k.newlabel('pc'), k.newlabel('nopf')
        k(f'''
        s_lshr_b32 s33, s2, 3
        s_sub_u32 s33, s33, 16
        s_cmp_ge_u32 s33, 8
        s_cbranch_scc1 {ls}
        s_getpc_b64 s[28:29]
        {lp}:
        s_add_u32 s28, s28, k1_qkv_kernel-{lp}
        s_addc_u32 s29, s29, 0
        s_mov_b32 s30, code_end_label-k1_qkv_kernel
        s_mov_b32 s31, 0x20000
        s_lshl_b32 s33, s33, 12
        v_lshlrev_b32 v3, 4, v0
        buffer_load_dwordx4 v[80:83], v3, s[28:31], s33 offen
        {ls}:
        ''')
    k(f'''
    s_cmp_ge_u32 s2, 128
    s_cbranch_scc1 {L_LN}
    ''')
    SC, SWM, SWQ, SKV, SOUT = 8, 12, 16, 20, 24
    srd_arg_load(k, SC, A_C)
    srd_arg_load(k, SWM, A_WMOD)
    srd_arg_load(k, SWQ, A_WQ)
    k(f's_load_dwordx4 s[28:31], s[0:1], {A_WK}')
    srd_fin(k, SC, 1024)
    srd_fin(k, SWM, 512 * 6144)
    srd_fin(k, SWQ, 512 * 1024)
    k(f'''
    v_lshrrev_b32 v3, 2, v0            ; rg
    v_and_b32 v4, 3, v0                ; ch
    v_mul_u32_u24 v5, {8 * 6144}, v3
    v_lshl_add_u32 v5, v4, 4, v5
    v_lshlrev_b32 v6, 4, v3            ; c voffset
    s_and_b32 s32, s2, 7               ; x
    s_lshr_b32 s33, s2, 3              ; y (0..15)
    s_cmp_ge_u32 s2, 64
    s_cbranch_scc1 {L_G0}
    s_lshr_b32 s34, s33, 2
    s_and_b32 s35, s33, 1
    s_lshl_b32 s36, s32, 1
    s_add_u32 s36, s36, s35            ; ks
    s_lshr_b32 s37, s33, 1
    s_and_b32 s37, s37, 1              ; half
    s_lshl_b32 s38, s36, 6
    s_cmp_eq_u32 s34, 0
    s_cselect_b32 s39, 1024, 0
    s_add_u32 s38, s38, s39            ; colbase*2
    v_lshrrev_b32 v7, 5, v2
    v_and_b32 v8, 31, v2
    v_lshlrev_b32 v7, 10, v7
    v_lshl_add_u32 v7, v8, 4, v7
    s_lshl_b32 s40, s36, 15
    s_lshl_b32 s41, s3, 13             ; w*8 rows
    s_add_u32 s40, s40, s41
    s_lshl_b32 s41, s37, 9
    s_add_u32 s40, s40, s41            ; + half*512
    s_lshl_b32 s42, s3, 12
    s_add_u32 s42, s42, {WT}
    s_waitcnt lgkmcnt(0)
    ''')
    for i in range(4):
        k(f's_mov_b32 m0, s42')
        k(f's_add_u32 s42, s42, 1024')
        k(f'buffer_load_dwordx4 v7, s[{SWQ}:{SWQ + 3}], s40 offen lds')
        k(f's_add_u32 s40, s40, 2048')
    k(f'''
    s_cmp_eq_u32 s37, 0
    s_cbranch_scc1 {L_AFTERDMA}
    s_cmp_ge_u32 s3, 2
    s_cbranch_scc1 {L_AFTERDMA}
    s_cmp_eq_u32 s3, 0
    s_cselect_b32 s{SKV}, s28, s30
    s_cselect_b32 s{SKV + 1}, s29, s31
    ''')
    srd_fin(k, SKV, 512 * 32)
    k(f'''
    v_lshlrev_b32 v8, 4, v2
    s_lshl_b32 s40, s36, 10
    s_lshl_b32 s42, s3, 10
    s_add_u32 s42, s42, {KVT}
    s_mov_b32 m0, s42
    s_nop 0
    buffer_load_dwordx4 v8, s[{SKV}:{SKV + 3}], s40 offen lds
    s_branch {L_AFTERDMA}
    {L_G0}:
    s_sub_u32 s33, s33, 8              ; y'
    s_lshr_b32 s34, s33, 1
    s_lshl_b32 s34, s34, 3
    s_add_u32 s34, s34, s32
    s_lshl_b32 s34, s34, 1
    s_and_b32 s35, s33, 1
    s_add_u32 s36, s34, s35
    s_lshl_b32 s38, s36, 6
    s_add_u32 s38, s38, 2048           ; colbase*2
    s_mov_b32 s34, 2                   ; role G
    s_waitcnt lgkmcnt(0)
    {L_AFTERDMA}:
    ''')
    stamp(k, 2)
    k(f'''
    buffer_load_dwordx4 v[8:11], v6, s[{SC}:{SC + 3}], 0 offen
    ''')
    W0 = 12
    for i in range(8):
        k(f'buffer_load_dwordx4 {vr(W0 + 4 * i, 4)}, v5, s[{SWM}:{SWM + 3}], s38 offen')
        if i < 7:
            k(f's_add_u32 s38, s38, 6144')
    S0 = 44
    T0 = 52
    ACC = 60
    k('s_waitcnt vmcnt(8)')
    stamp(k, 3)
    for d in range(4):
        unpack(k, S0 + 2 * d, S0 + 2 * d + 1, 8 + d)
    for j in range(8):
        k(f'v_mul_f32 v{T0 + j}, {f32bits(-LOG2E)}, v{S0 + j}')
    for j in range(8):
        k(f'v_exp_f32 v{T0 + j}, v{T0 + j}')
    for j in range(8):
        k(f'v_add_f32 v{T0 + j}, 1.0, v{T0 + j}')
    for j in range(8):
        k(f'v_rcp_f32 v{T0 + j}, v{T0 + j}')
    for j in range(8):
        k(f'v_mul_f32 v{T0 + j}, v{S0 + j}, v{T0 + j}')
    for d in range(4):
        k(f'v_cvt_pk_bf16_f32 v{8 + d}, v{T0 + 2 * d}, v{T0 + 2 * d + 1}')
    for d in range(4):
        unpack(k, S0 + 2 * d, S0 + 2 * d + 1, 8 + d)
    for i in range(8):
        k(f's_waitcnt vmcnt({7 - i})')
        for d in range(4):
            unpack(k, T0 + 2 * d, T0 + 2 * d + 1, W0 + 4 * i + d)
        for j in range(8):
            if i == 0:
                k(f'v_mul_f32 v{ACC + j}, v{T0 + j}, v{S0}')
            else:
                k(f'v_fmac_f32 v{ACC + j}, v{T0 + j}, v{S0 + i}')
    stamp(k, 4)
    for rot in (4, 8):
        for j in range(8):
            k(f'v_add_f32_dpp v{ACC + j}, v{ACC + j}, v{ACC + j} row_ror:{rot} row_mask:0xf bank_mask:0xf')
    k(f'''
    v_lshrrev_b32 v5, 4, v0            ; p = tid>>4
    v_lshlrev_b32 v5, 7, v5
    v_lshl_add_u32 v5, v4, 5, v5
    ds_write_b128 v5, {vr(ACC, 4)} offset:{PART}
    ds_write_b128 v5, {vr(ACC + 4, 4)} offset:{PART + 16}
    v_and_b32 v6, 31, v0
    v_lshlrev_b32 v6, 2, v6            ; col*4
    s_waitcnt lgkmcnt(0)
    s_barrier
    ''')
    for p in range(16):
        k(f'ds_read_b32 v{W0 + p}, v6 offset:{PART + p * 128}')
    stamp(k, 5)
    k('s_waitcnt lgkmcnt(8)')
    for p in range(4):
        k(f'v_add_f32 v{W0 + p}, v{W0 + p}, v{W0 + p + 4}')
    k('s_waitcnt lgkmcnt(0)')
    for p in range(4):
        k(f'v_add_f32 v{W0 + 8 + p}, v{W0 + 8 + p}, v{W0 + p + 12}')
    for p in range(4):
        k(f'v_add_f32 v{W0 + p}, v{W0 + p}, v{W0 + p + 8}')
    k(f'''
    v_add_f32 v{W0}, v{W0}, v{W0 + 1}
    v_add_f32 v{W0 + 2}, v{W0 + 2}, v{W0 + 3}
    v_add_f32 v{W0}, v{W0}, v{W0 + 2}
    v_cvt_pk_bf16_f32 v{W0}, v{W0}, v{W0}
    v_and_b32 v{W0}, 0xffff0000, v{W0}
    s_cmp_eq_u32 s34, 2
    s_cbranch_scc1 {L_G1}
    ''')
    srd_ws(k, SOUT, 4, 'WQKV')
    k(f'''
    v_add_f32 v{W0 + 1}, 1.0, v{W0}
    v_cvt_pk_bf16_f32 v{W0 + 1}, v{W0 + 1}, v{W0 + 1}
    v_and_b32 v{W0 + 1}, 0xffff0000, v{W0 + 1}
    s_cmp_eq_u32 s34, 0
    s_cselect_b64 vcc, -1, 0
    v_cndmask_b32 v{W0}, v{W0}, v{W0 + 1}, vcc
    s_lshl_b32 s40, s3, 7
    v_add_u32 v6, s40, v6
    ds_write_b32 v6, v{W0} offset:{SV}
    v_lshrrev_b32 v7, 4, v2            ; g
    v_lshl_add_u32 v8, v7, 4, s40      ; w*128 + g*16
    v_bfe_u32 v9, v2, 2, 2
    v_lshl_add_u32 v9, v7, 2, v9       ; row
    v_and_b32 v10, 3, v2
    v_lshlrev_b32 v10, 3, v10
    v_lshl_add_u32 v11, v9, 5, v10
    v_lshl_add_u32 v10, v9, 9, v10
    s_lshl_b32 s41, s3, 5
    v_add_u32 v10, s41, v10            ; + w*32
    s_lshl_b32 s41, s3, 10
    v_add_u32 v11, s41, v11
    s_waitcnt lgkmcnt(0)
    ds_read_b128 {vr(S0, 4)}, v8 offset:{SV}
    ds_read_b128 {vr(S0 + 4, 4)}, v8 offset:{SV + 64}
    ''')
    F0 = 12
    for q in range(4):
        k(f'ds_read_b64_tr_b16 {vr(F0 + 4 * q, 2)}, v10 offset:{WT + q * 128}')
        k(f'ds_read_b64_tr_b16 {vr(F0 + 4 * q + 2, 2)}, v10 offset:{WT + q * 128 + 16 * 512}')
    k(f'ds_read_b64_tr_b16 {vr(F0 + 16, 2)}, v11 offset:{KVT}')
    k(f'ds_read_b64_tr_b16 {vr(F0 + 18, 2)}, v11 offset:{KVT + 512}')
    k(f'''
    s_cmp_lt_u32 s3, 2
    s_cselect_b32 s43, s37, 0
    s_lshl_b32 s44, s37, 4
    s_add_u32 s44, s44, s3
    s_cmp_eq_u32 s34, 1
    s_cbranch_scc1 {L_SA}
    ''')
    SQ = 32
    k(f'''
    v_lshlrev_b32 v5, 4, v2
    s_mul_i32 s45, s36, 34
    s_add_u32 s46, s45, s44
    s_lshl_b32 s46, s46, 10
    s_waitcnt lgkmcnt(0)
    ''')
    for j in range(8):
        k(f'v_mul_f32 v{SQ + j}, {f32bits(QS)}, v{S0 + j}')
    def scale_store(f, sbase, soff):
        for d in range(4):
            unpack(k, T0 + 2 * d, T0 + 2 * d + 1, f + d)
        for j in range(8):
            k(f'v_mul_f32 v{T0 + j}, v{T0 + j}, v{sbase + j}')
        for d in range(4):
            k(f'v_cvt_pk_bf16_f32 v{f + d}, v{T0 + 2 * d}, v{T0 + 2 * d + 1}')
        k(f'buffer_store_dwordx4 {vr(f, 4)}, v5, s[{SOUT}:{SOUT + 3}], {soff} offen')
    for q in range(4):
        scale_store(F0 + 4 * q, SQ, 's46')
        k('s_add_u32 s46, s46, 4096')
    k(f'''
    s_cmp_eq_u32 s43, 0
    s_cbranch_scc1 {L_END}
    s_add_u32 s46, s45, 32
    s_add_u32 s46, s46, s3
    s_lshl_b32 s46, s46, 10
    ''')
    scale_store(F0 + 16, S0, 's46')
    k('s_endpgm')
    k(f'''
    {L_SA}:
    v_and_b32 v5, 15, v2
    v_lshlrev_b32 v5, 4, v5
    s_lshr_b32 s45, s36, 2
    s_lshl_b32 s45, s45, 8
    s_and_b32 s46, s36, 3
    s_lshl_b32 s46, s46, 2
    s_add_u32 s45, s45, s46
    s_add_u32 s45, s45, {16 * 34 * 1024}
    s_lshl_b32 s46, s44, 10
    s_add_u32 s46, s46, s45
    s_waitcnt lgkmcnt(0)
    ''')
    for d in range(4):
        k(f'v_cvt_pk_bf16_f32 v{SQ + d}, v{S0 + 2 * d}, v{S0 + 2 * d + 1}')
    D0 = 68
    for q in range(5):
        k(f'v_mfma_f32_16x16x32_bf16 {vr(D0 + 4 * q, 4)}, {vr(SQ, 4)}, {vr(F0 + 4 * q, 4)}, 0')
    def bias_store(d, scale, soff):
        if scale:
            k(f'v_mul_f32 v{d}, {f32bits(QS)}, v{d}')
        k(f'v_cvt_pk_bf16_f32 v{d + 1}, v{d}, v{d}')
        k(f'v_and_b32 v{d + 1}, 0xffff0000, v{d + 1}')
        k(f'v_sub_f32 v{d + 1}, v{d}, v{d + 1}')
        k(f'v_cvt_pk_bf16_f32 v{d}, v{d}, v{d + 1}')
        k(f'buffer_store_dword v{d}, v5, s[{SOUT}:{SOUT + 3}], {soff} offen')
    for q in range(4):
        bias_store(D0 + 4 * q, True, 's46')
        k('s_add_u32 s46, s46, 4096')
    k(f'''
    s_cmp_eq_u32 s43, 0
    s_cbranch_scc1 {L_END}
    s_add_u32 s46, s3, 32
    s_lshl_b32 s46, s46, 10
    s_add_u32 s46, s46, s45
    ''')
    bias_store(D0 + 16, False, 's46')
    k('s_endpgm')
    k(f'{L_G1}:')
    srd_ws(k, SOUT, 4, 'MOD')
    k(f'''
    s_lshr_b32 s40, s36, 4
    s_mov_b32 s41, {f32bits(LOG2E)}
    s_sub_u32 s42, 3, s40
    s_cmp_eq_u32 s40, 0
    s_cselect_b32 s41, 1.0, s41
    s_cselect_b32 s42, 0, s42
    s_cmp_eq_u32 s40, 3
    s_cselect_b32 s41, {f32bits(math.log(2.0))}, s41
    s_cselect_b32 s42, 3, s42
    s_cmp_eq_u32 s40, 2
    s_cselect_b32 s43, 1.0, 0
    v_add_f32 v{W0}, s43, v{W0}
    v_cvt_pk_bf16_f32 v{W0}, v{W0}, v{W0}
    v_and_b32 v{W0}, 0xffff0000, v{W0}
    v_mul_f32 v{W0}, s41, v{W0}
    s_lshl_b32 s42, s42, 8
    s_bfe_u32 s40, s36, 0x30001        ; (strip>>1)&7
    s_lshl_b32 s40, s40, 10
    s_add_u32 s40, s40, s42
    s_and_b32 s42, s36, 1
    s_lshl_b32 s42, s42, 7
    s_add_u32 s40, s40, s42
    buffer_store_dword v{W0}, v6, s[{SOUT}:{SOUT + 3}], s40 offen
    s_endpgm
    ''')
    SX = 8
    k(f'{L_LN}:')
    srd_arg_load(k, SX, A_X)
    srd_fin(k, SX, 2048 * 1024)
    X0 = 8
    k(f'''
    s_sub_u32 s32, s2, 128             ; tt
    v_and_b32 v3, 15, v2               ; t16
    v_lshrrev_b32 v4, 4, v2            ; g
    v_lshlrev_b32 v5, 10, v3
    v_lshl_add_u32 v5, v4, 3, v5
    s_lshl_b32 s33, s32, 14
    s_lshl_b32 s34, s3, 8
    s_add_u32 s34, s34, s33
    s_waitcnt lgkmcnt(0)
    ''')
    stamp(k, 2)
    for i in range(4):
        k(f'buffer_load_dwordx2 {vr(X0 + 4 * i, 2)}, v5, s[{SX}:{SX + 3}], s34 offen offset:{i * 64}')
        k(f'buffer_load_dwordx2 {vr(X0 + 4 * i + 2, 2)}, v5, s[{SX}:{SX + 3}], s34 offen offset:{i * 64 + 32}')
    srd_ws(k, SOUT, 4, 'XNF')
    U0 = 24
    k('v_mov_b32 v6, 0')
    k('v_mov_b32 v7, 0')
    for i in range(8):
        k(f's_waitcnt vmcnt({7 - i})')
        if i == 0:
            stamp(k, 3)
        for d in range(2):
            unpack(k, U0 + 4 * i + 2 * d, U0 + 4 * i + 2 * d + 1, X0 + 2 * i + d)
        for j in range(4):
            k(f'v_add_f32 v6, v6, v{U0 + 4 * i + j}')
            k(f'v_fmac_f32 v7, v{U0 + 4 * i + j}, v{U0 + 4 * i + j}')
    stamp(k, 4)
    ln_stats_and_scale(k, 6, 7, tmp=56, lane=2, t16=3, wave_s=3, ldsoff=0)
    stamp(k, 5)
    k('v_lshlrev_b32 v5, 4, v2')
    k('s_lshl_b32 s34, s3, 12')
    k('s_add_u32 s34, s34, s33')
    for i in range(4):
        for j in range(8):
            k(f'v_fma_f32 v{U0 + 8 * i + j}, v{U0 + 8 * i + j}, v56, v57')
        for d in range(4):
            k(f'v_cvt_pk_bf16_f32 v{X0 + 4 * i + d}, v{U0 + 8 * i + 2 * d}, v{U0 + 8 * i + 2 * d + 1}')
        k(f'buffer_store_dwordx4 {vr(X0 + 4 * i, 4)}, v5, s[{SOUT}:{SOUT + 3}], s34 offen offset:{i * 1024}')
    prof_exit(k, L_END, 0, 3, 8)
    return k


def ln_stats_and_scale(k, vS, vQ, tmp, lane, t16, wave_s, ldsoff):
    a, b = tmp, tmp + 1
    k(f'''
    v_permlane32_swap_b32 v{vS}, v{vQ}
    v_add_f32 v{a}, v{vS}, v{vQ}
    v_mov_b32 v{b}, v{a}
    v_permlane16_swap_b32 v{a}, v{b}
    v_add_f32 v{a}, v{a}, v{b}
    v_lshrrev_b32 v{b}, 5, v{lane}
    v_lshlrev_b32 v{b}, 8, v{b}
    v_lshl_add_u32 v{b}, v{t16}, 4, v{b}
    s_lshl_b32 s60, s{wave_s}, 2
    v_add_u32 v{b}, s60, v{b}
    ds_write_b32 v{b}, v{a} offset:{ldsoff}
    v_lshlrev_b32 v{b}, 4, v{t16}
    s_waitcnt lgkmcnt(0)
    s_barrier
    ds_read_b128 {vr(tmp + 2, 4)}, v{b} offset:{ldsoff}
    ds_read_b128 {vr(tmp + 6, 4)}, v{b} offset:{ldsoff + 256}
    s_waitcnt lgkmcnt(0)
    v_add_f32 v{tmp + 2}, v{tmp + 2}, v{tmp + 3}
    v_add_f32 v{tmp + 6}, v{tmp + 6}, v{tmp + 7}
    v_add_f32 v{tmp + 4}, v{tmp + 4}, v{tmp + 5}
    v_add_f32 v{tmp + 8}, v{tmp + 8}, v{tmp + 9}
    v_add_f32 v{tmp + 2}, v{tmp + 2}, v{tmp + 4}
    v_add_f32 v{tmp + 6}, v{tmp + 6}, v{tmp + 8}
    v_mul_f32 v{tmp + 2}, {f32bits(1.0 / 512)}, v{tmp + 2}      ; mean
    v_mul_f32 v{tmp + 6}, {f32bits(1.0 / 512)}, v{tmp + 6}      ; E[x^2]
    v_fma_f32 v{tmp + 6}, -v{tmp + 2}, v{tmp + 2}, v{tmp + 6}   ; var
    v_max_f32 v{tmp + 6}, 0, v{tmp + 6}
    v_cvt_pk_bf16_f32 v{tmp + 6}, v{tmp + 6}, v{tmp + 2}
    v_and_b32 v{tmp + 2}, 0xffff0000, v{tmp + 6}
    v_lshlrev_b32 v{tmp + 6}, 16, v{tmp + 6}
    v_add_f32 v{tmp + 6}, {f32bits(1e-5)}, v{tmp + 6}
    v_cvt_pk_bf16_f32 v{tmp + 6}, v{tmp + 6}, v{tmp + 6}
    v_lshlrev_b32 v{tmp + 6}, 16, v{tmp + 6}
    v_sqrt_f32 v{tmp + 6}, v{tmp + 6}
    v_cvt_pk_bf16_f32 v{tmp + 6}, v{tmp + 6}, v{tmp + 6}
    v_lshlrev_b32 v{tmp + 6}, 16, v{tmp + 6}
    v_rcp_f32 v{a}, v{tmp + 6}
    v_mul_f32 v{b}, -v{tmp + 2}, v{a}
    ''')
```

```python
from common import *

PAR = 32768
PBO, PBL, OB = 0, 16384, 17408
XS, FLAG, LNS = 20480, 30720, 30976
MT, QS_ = PAR + 20480, 61440
DUMMY = 61440 + 8192 + 1024
GA = DUMMY + 2048
LDS_BYTES = GA + 8192
WARM = int(os.environ.get('K2WARM', '1'))
PRIO = os.environ.get('K2PRIO', '1A,5A,7A,0C')
PRIO0 = os.environ.get('K2PRIO0', '0A,5A,7A,9A')
TB = int(os.environ.get('K2TB', '1'))
KVD = int(os.environ.get('K2KVD', '3'))
ONES = os.environ.get('K2ONES', '0x110000')
XP = int(os.environ.get('K2X', '0'))

def gen_k2():
    k = Kern('k2_attn_kernel')
    L = lambda n: k.newlabel(n)
    L_END, L_FB = L('end'), L('fb')
    S = [10, 26]
    P, Q, ACC, T, OBF, VM = 42, 50, 54, 70, 94, 102
    AK, AV, AO, AW = 0, 32, 96, 112
    SW, SX = 8, 12
    sW, sJ, sWO0, sWO1, sLO, sRNG = 3, 16, 17, 18, 19, 20
    sMASK, sBAD, sTMP = 22, 24, 26
    sG, sG8, sKV = 21, 28, 36
    k(f'''
    s_cmp_ge_u32 s2, 256
    s_cbranch_scc1 {L_END}
    ''')
    stamp(k, 0, True)
    stamp(k, 1)
    k(f'''
    s_load_dwordx2 s[{SW}:{SW + 1}], s[0:1], {A_WS}
    s_load_dwordx2 s[{SX}:{SX + 1}], s[0:1], {A_X}
    s_load_dwordx4 s[40:43], s[0:1], {B_W1}
    v_lshrrev_b32 v1, 6, v0
    v_and_b32 v0, 63, v0               ; lane
    v_readfirstlane_b32 s{sW}, v1
    v_lshlrev_b32 v1, 4, v0            ; lane*16
    s_mov_b32 s{SW + 2}, 0x2000000
    s_mov_b32 s{SW + 3}, 0x20000
    s_mov_b32 s{SX + 2}, {2048 * 1024}
    s_mov_b32 s{SX + 3}, 0x20000
    s_mov_b32 s{sMASK}, 0xffff
    s_mov_b32 s{sMASK + 1}, 0xffff
    s_mov_b32 s{sLO}, {f32bits(2.0 ** -90)}
    s_mov_b32 s{sRNG}, {130 << 23}
    s_and_b32 s38, s2, 7
    s_lshr_b32 s39, s2, 3
    s_lshl_b32 s{sG}, s38, 5
    s_add_u32 s{sG}, s{sG}, s39
    s_lshl_b32 s{sG8}, s{sG}, 13
    s_cmp_lt_u32 s{sW}, 4
    s_cselect_b64 vcc, -1, 0
    ''')

    def body(mode):
        L_LOOP, L_W7, L_W7R = [[L(n), L(n)] for n in ('loop', 'w7', 'w7r')]
        k(f'''
        v_mov_b32 v{T}, 0
        v_mov_b32 v{T + 1}, 0
        v_mov_b32 v{T + 2}, 0
        v_mov_b32 v{T + 3}, 0x3afe3f80     ; 1.0, 127 * 2^-16
        v_mov_b32 v{T + 4}, 0
        v_mov_b32 v{T + 5}, 0
        v_mov_b32 v{T + 6}, 0
        v_mov_b32 v{T + 7}, 0
        s_mov_b64 exec, {ONES}
        v_mov_b32 v{T + 7}, 0x3f803f80
        s_mov_b64 exec, -1
        v_lshrrev_b32 v5, 5, v0            ; hh
        v_and_b32 v9, 15, v0
        v_lshlrev_b32 v9, 4, v9
        v_lshl_add_u32 v9, v5, 8, v9       ; V voffset
        ''')
        for i in range(4):
            k(f'v_mfma_f32_32x32x16_bf16 {ar(AV + 16 * i, 16)}, {vr(T, 4)}, {vr(T + 4, 4)}, 0')
        k(f'v_mov_b32 v{T + 7}, 0')
        for i in range(2):
            k(f'v_mfma_f32_32x32x16_bf16 {ar(AW + 16 * i, 16)}, {vr(T + 4, 4)}, {vr(T + 4, 4)}, 0')
        k(f'v_mfma_f32_32x32x16_bf16 {vr(ACC, 16)}, {vr(T + 4, 4)}, {vr(T + 4, 4)}, 0')
        k(f'''
        ds_write_b128 v1, {vr(T + 4, 4)} offset:{PAR + OB}
        ds_write_b32 v{T + 4}, v{T + 4} offset:{FLAG}
        s_add_u32 s32, s{sG8}, {WS['QF'][0]}
        s_lshl_b32 s33, s{sW}, 10          ; w*1024
        s_add_u32 s34, s32, s33
        s_add_u32 s35, s33, {QS_}
        s_mov_b32 m0, s35
        s_lshl_b32 s{sKV}, s{sW}, 14
        s_add_u32 s{sKV}, s{sKV}, {WS['KVF'][0]}
        s_lshl_b32 s{sWO0}, s{sW}, 12
        s_add_u32 s{sWO0}, s{sWO0}, {WS['WOF'][0]}
        s_add_u32 s{sWO1}, s{sWO0}, 32768
        s_lshl_b32 s35, s{sW}, 11
        v_add_u32 v2, s35, v1
        v_and_b32 v3, 31, v0
        v_lshlrev_b32 v3, 5, v3
        s_lshl_b32 s35, s{sW}, 2
        v_add_u32 v3, s35, v3
        s_lshl_b32 s35, s{sW}, 9
        v_lshl_add_u32 v4, v0, 3, s35
        v_lshrrev_b32 v5, 1, v0            ; n
        v_lshrrev_b32 v6, 4, v5            ; ksl
        v_lshlrev_b32 v6, 9, v6
        v_and_b32 v7, 7, v5
        v_lshl_add_u32 v6, v7, 4, v6
        v_bfe_u32 v7, v5, 3, 1
        v_lshl_add_u32 v6, v7, 3, v6
        v_and_b32 v7, 1, v0
        v_lshl_add_u32 v6, v7, 2, v6
        s_lshl_b32 s35, s{sW}, 7
        v_add_u32 v6, s35, v6
        v_lshlrev_b32 v5, 5, v5
        v_lshrrev_b32 v7, 4, v0
        v_lshlrev_b32 v7, 3, v7
        v_and_b32 v8, 7, v0
        v_add_u32 v7, v7, v8
        v_lshlrev_b32 v7, 4, v7
        v_add_u32 v7, {PAR}, v7
        v_add_u32 v8, {QS_ + 2048}, v1     ; Q read
        s_mov_b32 s{sJ}, 1
        s_mov_b64 s[{sBAD}:{sBAD + 1}], 0
        ''')
        if mode:
            k(f'''
            v_and_b32 v{VM + 2}, 31, v0
            v_lshlrev_b32 v{VM + 2}, 5, v{VM + 2}
            v_add_u32 v{VM + 2}, {MT}, v{VM + 2}
            ''')
        k('s_waitcnt lgkmcnt(0)')
        if not mode:
            stamp(k, 2)
        vm = []
        kvo = [0]
        def setkv(t):
            if t != kvo[0]:
                k(f's_add_u32 s{sKV}, s{sKV}, {2048 * (t - kvo[0])}')
                kvo[0] = t
        def ldK(t, base):
            k(f'buffer_load_dwordx4 {ar(AK + 4 * t, 4)}, v1, s[{SW}:{SW + 3}], s{sKV} offen offset:{2048 * (t - base)}')
            vm.append(('K', t))
        def ldKV(t):
            setkv(t)
            k(f's_mov_b64 exec, s[{sMASK}:{sMASK + 1}]')
            k(f'buffer_load_dwordx4 {ar(AV + 8 * t, 4)}, v9, s[{SW}:{SW + 3}], s{sKV} offen offset:1024')
            k(f'buffer_load_dwordx4 {ar(AV + 8 * t + 4, 4)}, v9, s[{SW}:{SW + 3}], s{sKV} offen offset:1536')
            k(f's_mov_b64 exec, -1')
            vm.extend([('Va', t), ('Vb', t)])
            if t < 7:
                ldK(t + 1, t)
        def need(*names):
            n = min(len(vm) - 1 - vm.index(x) for x in names)
            k(f's_waitcnt vmcnt({n})')
        def load_max(dst):
            tmp = T + 8
            k(f'''
            ds_read_b128 {vr(tmp, 4)}, v{VM + 2}
            ds_read_b128 {vr(tmp + 4, 4)}, v{VM + 2} offset:16
            v_add_u32 v{VM + 2}, 1024, v{VM + 2}
            s_waitcnt lgkmcnt(0)
            v_max3_f32 v{tmp}, v{tmp}, v{tmp + 1}, v{tmp + 2}
            v_max3_f32 v{tmp + 3}, v{tmp + 3}, v{tmp + 4}, v{tmp + 5}
            v_max3_f32 v{tmp}, v{tmp}, v{tmp + 6}, v{tmp + 7}
            v_max_f32 v{dst}, v{tmp}, v{tmp + 3}
            ''')
        def ex(X, a, b, m=VM):
            for i in range(a, b):
                if mode:
                    k(f'v_sub_f32 v{X + i}, v{X + i}, v{m}')
                k(f'v_exp_f32 v{X + i}, v{X + i}')
        def cv(X, a, b):
            for i in range(a, b):
                k(f'v_cvt_pk_bf16_f32 v{P + i}, v{X + 2 * i}, v{X + 2 * i + 1}')
        def pb_write():
            k(f'''
            ds_write_b128 v2, {ar(AO, 4)} offset:{PBO}
            ds_write_b128 v2, {ar(AO + 4, 4)} offset:{PBO + 1024}
            ds_write_b32 v3, a{AO + 8} offset:{PBL}
            ''')
        def red_reads(a=0, b=10):
            for p in range(a, b):
                if p < 8:
                    k(f'ds_read_b64 {vr(T + 2 * p, 2)}, v4 offset:{PBO + p * 2048}')
                else:
                    k(f'ds_read_b128 {vr(T + 16 + 4 * (p - 8), 4)}, v5 offset:{PBL + 16 * (p - 8)}')
        def ob_reads(B):
            k(f'ds_read_b128 {vr(B, 4)}, v7 offset:{OB}')
            k(f'ds_read_b128 {vr(B + 4, 4)}, v7 offset:{OB + 512}')
        def red_calc(toggle, part=3):
            pk = lambda a, b: k(f'v_pk_add_f32 {vr(T + a, 2)}, {vr(T + a, 2)}, {vr(T + b, 2)}')
            if part & 1:
                pk(16, 18); pk(20, 22); pk(0, 2); pk(16, 20); pk(4, 6); pk(8, 10)
                k(f'v_add_f32 v{T + 16}, v{T + 16}, v{T + 17}')
                pk(12, 14)
                k(f'v_rcp_f32 v{T + 17}, v{T + 16}')
            if not part & 2:
                return
            pk(0, 4); pk(8, 12)
            if not mode:
                k(f'v_subrev_u32 v{T + 18}, s{sLO}, v{T + 16}')
            pk(0, 8)
            if not mode:
                k(f'v_cmp_lt_u32 s[{sTMP}:{sTMP + 1}], s{sRNG}, v{T + 18}')
            k(f'v_pk_mul_f32 {vr(T, 2)}, {vr(T, 2)}, {vr(T + 16, 2)} op_sel:[0,1] op_sel_hi:[1,1]')
            if toggle:
                k(f'v_xor_b32 v4, {PAR}, v4')
                k(f'v_xor_b32 v5, {PAR}, v5')
            k(f'v_cvt_pk_bf16_f32 v{T}, v{T}, v{T + 1}')
            if not mode:
                k(f's_or_b64 s[{sBAD}:{sBAD + 1}], s[{sBAD}:{sBAD + 1}], s[{sTMP}:{sTMP + 1}]')
            k(f'ds_write_b32 v6, v{T} offset:{OB}')
            if toggle:
                k(f'v_xor_b32 v6, {PAR}, v6')
        def guard_red(fn):
            l = L('nr')
            k(f's_cbranch_vccz {l}')
            fn()
            k(f'{l}:')
        def opm(i, wreg, B, nc=False):
            ksl, c = divmod(i, 4)
            k(f'v_mfma_f32_16x16x32_bf16 {vr(ACC + 4 * c, 4)}, {wreg(4 * i)}, {vr(B + 4 * ksl, 4)}, {vr(ACC + 4 * c, 4)}' + (' ;nocheck' if nc else ''))
        def wo_load(i, dst):
            ksl, c = divmod(i, 4)
            k(f'buffer_load_dwordx4 {dst}, v1, s[{SW}:{SW + 3}], s{sWO1 if ksl else sWO0} offen offset:{c * 1024}')
        aw = lambda o: ar(AW + o, 4)
        def op_step(i):
            if XP & 1:
                return
            k(f's_waitcnt vmcnt({8 if WARM and not mode else 7})')
            opm(i, aw, OBF)
            wo_load(i, aw(4 * i))

        def rnd(first, red=False):
            RR = {(2, 'B'): (0, 1), (2, 'C'): (1, 2), (2, 'D'): (2, 3), (2, 'E'): (3, 4),
                  (3, 'B'): (4, 5), (3, 'C'): (5, 6), (3, 'E'): (6, 7), (4, 'B'): (7, 8), (4, 'C'): (8, 9), (4, 'E'): (9, 10)}
            def slot(t, s_):
                slot2(t, s_)
                pp = (PRIO0 if first else PRIO).split(',')
                if f'{t}{s_}' in pp:
                    k(f's_setprio {3 - pp.index(f"{t}{s_}")}')
            def slot2(t, s_):
                if first:
                    return
                if red and (t, s_) in RR:
                    red_reads(*RR[(t, s_)])
                if red and (t, s_) == (5, 'B'):
                    k('s_waitcnt lgkmcnt(0)')
                    red_calc(True, 1)
                if red and (t, s_) == (5, 'E'):
                    red_calc(True, 2)
                if (t, s_) == (TB, 'A'):
                    k('s_waitcnt lgkmcnt(0)')
                    if not XP & 2:
                        k('s_barrier')
                    ob_reads(OBF)
                    k(f'v_xor_b32 v7, {PAR}, v7')
                if (t, s_) == (2, 'A') and WARM and not mode:
                    k('buffer_load_dword v9, s[40:43], s39 offen lds')
                    k('s_add_u32 s39, s39, s46')
                if (t, s_) == (3, 'A'):
                    k(f's_waitcnt lgkmcnt({4 if red else 0})')
                if 3 <= t <= 6 and s_ in 'AD':
                    op_step(2 * (t - 3) + (s_ == 'D'))
                if (t, s_) == (7, 'A'):
                    k(f'''
                    s_add_u32 s{sWO0}, s{sWO0}, 65536
                    s_add_u32 s{sWO1}, s{sWO1}, 65536
                    s_cmp_eq_u32 s{sJ}, 7
                    s_cbranch_scc1 {L_W7[red]}
                    {L_W7R[red]}:
                    ''')
            for t in range(8):
                X, Y = S[t & 1], S[(t + 1) & 1]
                ex(X, 2, 5)
                slot(t, 'A')
                if not first:
                    pass
                elif t < 8 - KVD:
                    ldKV(t + KVD)
                if first and t == 6:
                    k(f'''
                    s_add_u32 s35, s33, {XS}
                    s_mov_b32 m0, s35
                    s_lshl_b32 s35, s{sW}, 7
                    s_add_u32 s35, s35, s{sG8}
                    v_lshrrev_b32 v9, 3, v0
                    v_lshlrev_b32 v9, 10, v9
                    v_and_b32 v{T}, 7, v0
                    v_lshl_add_u32 v9, v{T}, 4, v9
                    buffer_load_dwordx4 v9, s[{SX}:{SX + 3}], s35 offen lds
                    s_add_u32 s35, s33, {GA}
                    s_mov_b32 m0, s35
                    s_add_u32 s34, s33, {WS['MOD'][0]}
                    buffer_load_dwordx4 v1, s[{SW}:{SW + 3}], s34 offen lds
                    ''')
                    vm.extend([('XS', 0), ('GA', 0)])
                if first and t == 7 and WARM and not mode:
                    k(f'''
                    s_and_b32 s34, s{sW}, 3
                    s_lshl_b32 s39, s39, 2
                    s_add_u32 s39, s39, s34
                    s_mul_i32 s39, s39, 14336
                    s_and_b32 s38, s38, 1
                    s_cmp_lt_u32 s{sW}, 4
                    s_cselect_b32 s40, s40, s42
                    s_cselect_b32 s41, s41, s43
                    s_cselect_b32 s35, 1, 2
                    s_cselect_b32 s44, 7, 2
                    s_cselect_b32 s45, 1, 3
                    s_cselect_b32 s46, 1, 8
                    s_lshl_b32 s34, s44, 8
                    s_lshl_b32 s44, s44, 9
                    s_lshl_b32 s46, s46, 8
                    s_mov_b32 s42, {512 * 3584}
                    s_mov_b32 s43, 0x20000
                    s_mul_i32 s38, s38, s34
                    s_add_u32 s39, s39, s38
                    v_lshrrev_b32 v9, s35, v0
                    v_mul_u32_u24 v9, s44, v9
                    v_and_b32 v{T}, s45, v0
                    v_lshl_add_u32 v9, v{T}, 7, v9
                    v_lshrrev_b32 v{T}, 3, v0
                    v_lshl_add_u32 v9, v{T}, 24, v9
                    s_mov_b32 m0, {DUMMY}
                    ''')
                ex(X, 5, 8)
                if t == 7:
                    if mode:
                        load_max(VM + 1)
                    k('s_waitcnt lgkmcnt(0)')
                elif first:
                    need(('K', t + 1))
                k(f'v_mfma_f32_32x32x16_bf16 {vr(Y, 16)}, {ar(AK + 4 * ((t + 1) & 7), 4)}, {vr(Q, 4)}, 0')
                slot(t, 'B')
                if t == 6 and not first:
                    k(f'ds_read_b128 {vr(Q, 4)}, v8')
                    k(f'v_add_u32 v8, 1024, v8')
                if first and t == 0:
                    k(f'buffer_load_dwordx4 v1, s[{SW}:{SW + 3}], s34 offen lds')
                    k(f'buffer_load_dwordx4 {vr(OBF, 4)}, v1, s[{SW}:{SW + 3}], s32 offen offset:1024')
                    vm.extend([('Q', 0), ('Q1', 0)])
                cv(X, 0, 4)
                if first and t == 6:
                    k(f'v_pk_mov_b32 {vr(Q, 2)}, {vr(OBF, 2)}, {vr(OBF, 2)} op_sel:[0,1]')
                    k(f'v_pk_mov_b32 {vr(Q + 2, 2)}, {vr(OBF + 2, 2)}, {vr(OBF + 2, 2)} op_sel:[0,1]')
                ex(X, 8, 12)
                if t == 0 and not first:
                    pb_write()
                if first:
                    need(('Va', t), ('Vb', t))
                Cin = '0' if t == 0 else ar(AO, 16)
                k(f'v_mfma_f32_32x32x16_bf16 {ar(AO, 16)}, {ar(AV + 8 * t, 4)}, {vr(P, 4)}, {Cin} ;nocheck')
                if t == 0 and not first:
                    k(f'v_xor_b32 v2, {PAR}, v2')
                    k(f'v_xor_b32 v3, {PAR}, v3')
                slot(t, 'C')
                ex(X, 12, 14)
                cv(X, 4, 6)
                slot(t, 'D')
                ex(X, 14, 16)
                cv(X, 6, 8)
                if t == 7 and mode:
                    k(f'v_mov_b32 v{VM}, v{VM + 1}')
                ex(Y, 0, 2)
                k(f'v_mfma_f32_32x32x16_bf16 {ar(AO, 16)}, {ar(AV + 8 * t + 4, 4)}, {vr(P + 4, 4)}, {ar(AO, 16)} ;nocheck')
                slot(t, 'E')

        k(f'buffer_load_dwordx4 {vr(Q, 4)}, v1, s[{SW}:{SW + 3}], s32 offen')
        vm.append(('Q0', 0))
        ldK(0, 0)
        for t in range(KVD):
            ldKV(t)
        if mode:
            load_max(VM)
        need(('K', 0))
        if not mode:
            stamp(k, 3)
        k(f'v_mfma_f32_32x32x16_bf16 {vr(S[0], 16)}, {ar(AK, 4)}, {vr(Q, 4)}, 0')
        ex(S[0], 0, 2)
        rnd(True)
        L_TAIL = L('tail')
        k(f's_cbranch_vccz {L_LOOP[0]}')
        for red in (1, 0):
            k(f'{L_LOOP[red]}:')
            if PROF and not mode:
                k('s_memtime s[62:63]')
                k('s_waitcnt lgkmcnt(0)')
                for i in range(6):
                    k(f's_mov_b32 s{68 + i}, s{69 + i}')
                k('s_mov_b32 s74, s62')
            rnd(False, red)
            k(f'''
            s_add_u32 s{sJ}, s{sJ}, 1
            s_cmp_lt_u32 s{sJ}, 8
            s_cbranch_scc1 {L_LOOP[red]}
            ''')
            if red:
                k(f's_branch {L_TAIL}')
        k(f'{L_TAIL}:')
        if not mode:
            stamp(k, 11)
        XR, GR = S[0], S[0] + 4
        k(f'''
        v_and_b32 v8, 7, v0                ; t
        v_bfe_u32 v9, v0, 3, 1
        v_lshrrev_b32 v{Q}, 4, v0          ; g
        v_lshlrev_b32 v{Q + 1}, 7, v8
        v_lshl_add_u32 v{Q + 1}, v9, 6, v{Q + 1}
        v_lshl_add_u32 v{Q + 1}, v{Q}, 3, v{Q + 1}
        v_add_u32 v{Q + 1}, s33, v{Q + 1}
        v_lshlrev_b32 v{Q + 2}, 7, v9
        v_lshl_add_u32 v{Q + 2}, v{Q}, 4, v{Q + 2}
        s_add_u32 s35, s33, {GA}
        v_add_u32 v{Q + 2}, s35, v{Q + 2}
        ''')
        pb_write()
        k(f'''
        ds_read_b64 {vr(XR, 2)}, v{Q + 1} offset:{XS}
        ds_read_b64 {vr(XR + 2, 2)}, v{Q + 1} offset:{XS + 32}
        ds_read_b128 {vr(GR, 4)}, v{Q + 2}
        ds_read_b128 {vr(GR + 4, 4)}, v{Q + 2} offset:64
        v_lshlrev_b32 v2, 11, v9
        v_lshl_add_u32 v2, v{Q}, 9, v2
        v_lshl_add_u32 v2, v8, 4, v2
        s_lshr_b32 s33, s{sG}, 2
        s_lshl_b32 s33, s33, 15
        s_lshl_b32 s34, s{sW}, 12
        s_add_u32 s33, s33, s34
        s_and_b32 s34, s{sG}, 3
        s_lshl_b32 s34, s34, 7
        s_add_u32 s33, s33, s34
        s_add_u32 s34, s33, {WS['X1F'][0]}
        s_add_u32 s35, s33, {WS['XN2F'][0]}
        s_waitcnt lgkmcnt(0)
        s_barrier
        ''')
        guard_red(red_reads)
        ob_reads(OBF)
        k(f'v_xor_b32 v7, {PAR}, v7')
        U = S[1]
        for d in range(4):
            unpack(k, U + 2 * d, U + 2 * d + 1, XR + d)
        def red_tail():
            k('s_waitcnt lgkmcnt(2)')
            red_calc(False)
            if mode:
                return
            l = L('ok')
            k(f'''
            s_cmp_eq_u64 s[{sBAD}:{sBAD + 1}], 0
            s_cbranch_scc1 {l}
            v_mov_b32 v{T + 1}, 0
            v_mov_b32 v{T + 2}, 1
            ds_write_b32 v{T + 1}, v{T + 2} offset:{FLAG}
            {l}:
            ''')
        guard_red(red_tail)
        k('s_waitcnt vmcnt(8) lgkmcnt(0)')
        k('s_barrier')
        ob_reads(P)
        k(f'v_mov_b32 v9, 0')
        k(f'ds_read_b32 v9, v9 offset:{FLAG}')
        for i in range(4):
            k(f'ds_read_b128 {vr(T + 4 * i, 4)}, v{Q + 2} offset:{256 * (1 + i // 2) + 64 * (i & 1)}')
        for i in range(8):
            opm(i, aw, OBF, True)
        if not mode:
            stamp(k, 12)
        k('s_waitcnt vmcnt(0) lgkmcnt(0)')
        for i in range(8):
            opm(i, lambda o: ar(AV + o, 4), P)
        if not mode:
            k(f'''
            v_readfirstlane_b32 s36, v9
            s_cmp_lg_u32 s36, 0
            s_cbranch_scc1 {L_FB}
            ''')
        for i in range(8):
            k(f'v_mov_b32_dpp v{ACC + i}, v{ACC + 8 + i} quad_perm:[0,1,2,3] row_mask:0xf bank_mask:0xc')
        for i in range(8):
            k(f'v_fmac_f32 v{U + i}, v{GR + i}, v{ACC + i}')
        for d in range(4):
            k(f'v_cvt_pk_bf16_f32 v{XR + d}, v{U + 2 * d}, v{U + 2 * d + 1}')
        k(f'buffer_store_dwordx4 {vr(XR, 4)}, v2, s[{SW}:{SW + 3}], s34 offen')
        for d in range(4):
            unpack(k, U + 2 * d, U + 2 * d + 1, XR + d)
        a, b = U + 8, U + 9
        k(f'v_add_f32 v{a}, v{U}, v{U + 1}')
        k(f'v_mul_f32 v{b}, v{U}, v{U}')
        for i in range(1, 8):
            if i > 1:
                k(f'v_add_f32 v{a}, v{a}, v{U + i}')
            k(f'v_fmac_f32 v{b}, v{U + i}, v{U + i}')
        k(f'''
        v_permlane32_swap_b32 v{a}, v{b}
        v_add_f32 v{a}, v{a}, v{b}
        v_mov_b32 v{b}, v{a}
        v_permlane16_swap_b32 v{a}, v{b}
        v_add_f32 v{a}, v{a}, v{b}
        v_add_f32_dpp v{a}, v{a}, v{a} row_ror:8 row_mask:0xf bank_mask:0xf
        v_lshrrev_b32 v{b}, 5, v0
        v_lshlrev_b32 v{b}, 8, v{b}
        v_lshlrev_b32 v8, 5, v8
        s_lshl_b32 s33, s{sW}, 2
        v_add3_u32 v{b}, v{b}, v8, s33
        ds_write_b32 v{b}, v{a} offset:{LNS}
        s_waitcnt lgkmcnt(0)
        s_barrier
        ds_read_b128 {vr(ACC, 4)}, v8 offset:{LNS}
        ds_read_b128 {vr(ACC + 4, 4)}, v8 offset:{LNS + 16}
        ds_read_b128 {vr(ACC + 8, 4)}, v8 offset:{LNS + 256}
        ds_read_b128 {vr(ACC + 12, 4)}, v8 offset:{LNS + 272}
        s_waitcnt lgkmcnt(0)
        v_pk_add_f32 {vr(ACC, 2)}, {vr(ACC, 2)}, {vr(ACC + 2, 2)}
        v_pk_add_f32 {vr(ACC + 4, 2)}, {vr(ACC + 4, 2)}, {vr(ACC + 6, 2)}
        v_pk_add_f32 {vr(ACC + 8, 2)}, {vr(ACC + 8, 2)}, {vr(ACC + 10, 2)}
        v_pk_add_f32 {vr(ACC + 12, 2)}, {vr(ACC + 12, 2)}, {vr(ACC + 14, 2)}
        v_pk_add_f32 {vr(ACC, 2)}, {vr(ACC, 2)}, {vr(ACC + 4, 2)}
        v_pk_add_f32 {vr(ACC + 8, 2)}, {vr(ACC + 8, 2)}, {vr(ACC + 12, 2)}
        v_add_f32 v{ACC}, v{ACC}, v{ACC + 1}
        v_add_f32 v{ACC + 8}, v{ACC + 8}, v{ACC + 9}
        ''')
        ln_finish(k, ACC, ACC + 8, a, b)
        for i in range(8):
            k(f'v_fma_f32 v{U + i}, v{U + i}, v{a}, v{b}')
        for i in range(0, 8, 2):
            k(f'v_pk_fma_f32 {vr(U + i, 2)}, {vr(U + i, 2)}, {vr(T + i, 2)}, {vr(T + 8 + i, 2)}')
        for d in range(4):
            k(f'v_cvt_pk_bf16_f32 v{ACC + d}, v{U + 2 * d}, v{U + 2 * d + 1}')
        k(f'''
        buffer_store_dwordx4 {vr(ACC, 4)}, v2, s[{SW}:{SW + 3}], s35 offen
        ''')
        if not mode:
            stamp_flush(k, 2, sW, 15)
            k(f'{L_END}:')
        k('s_endpgm')
        for red in (0, 1):
            k(f'{L_W7[red]}:')
            for i in range(8):
                wo_load(i, ar(AV + 4 * i, 4))
            k(f's_branch {L_W7R[red]}')

    body(0)
    L_FBL = L('fbl')
    k(f'''
    {L_FB}:
    s_mov_b32 s{sJ}, 0
    v_add_u32 v8, {QS_}, v1
    v_and_b32 v9, 31, v0
    v_lshlrev_b32 v9, 5, v9
    v_add_u32 v9, {MT}, v9
    s_lshl_b32 s33, s{sW}, 2
    v_add_u32 v7, s33, v9
    {L_FBL}:
    ds_read_b128 {vr(Q, 4)}, v8
    v_add_u32 v8, 1024, v8
    v_mov_b32 v{T}, 0xff800000
    s_waitcnt lgkmcnt(0)
    ''')
    for t in range(8):
        k(f'v_mfma_f32_32x32x16_bf16 {vr(S[0], 16)}, {ar(AK + 4 * t, 4)}, {vr(Q, 4)}, 0')
        for i in range(8):
            k(f'v_max3_f32 v{T}, v{T}, v{S[0] + 2 * i}, v{S[0] + 2 * i + 1}')
    k(f'''
    v_mov_b32 v{T + 1}, v{T}
    v_permlane32_swap_b32 v{T}, v{T + 1}
    v_max_f32 v{T}, v{T}, v{T + 1}
    ds_write_b32 v7, v{T}
    v_add_u32 v7, 1024, v7
    s_add_u32 s{sJ}, s{sJ}, 1
    s_cmp_lt_u32 s{sJ}, 8
    s_cbranch_scc1 {L_FBL}
    s_waitcnt lgkmcnt(0)
    s_barrier
    ''')
    body(1)
    return k

def entry():
    return (gen_k2(), 256, 512, LDS_BYTES)
```

```python
from common import *

NS = 8
LDS_BYTES = NS * 8192
D = int(os.environ.get('K3D', '4'))
LA = int(os.environ.get('K3LA', '4'))
RT = int(os.environ.get('K3RT', '1'))
EP = int(os.environ.get('K3EP', '3'))

def gen_k3():
    k = Kern('k3_ffn1_kernel')
    L_END = k.newlabel('end')
    SW, S1 = 8, 12
    sW = 3
    AD, WB, ACC, T = 4, 8, 40, 104
    NF = 8
    k(f'''
    s_cmp_ge_u32 s2, 224
    s_cbranch_scc1 {L_END}
    ''')
    stamp(k, 0, True)
    stamp(k, 1)
    k(f'''
    s_load_dwordx2 s[{SW}:{SW + 1}], s[0:1], {A_WS}
    s_load_dwordx2 s[{S1}:{S1 + 1}], s[0:1], {B_W1}
    v_lshrrev_b32 v1, 6, v0
    v_and_b32 v0, 63, v0
    v_readfirstlane_b32 s{sW}, v1
    v_lshlrev_b32 v1, 4, v0            ; lane*16
    s_mov_b32 s{SW + 2}, 0x2000000
    s_mov_b32 s{SW + 3}, 0x20000
    s_mov_b32 s{S1 + 2}, {512 * 3584}
    s_mov_b32 s{S1 + 3}, 0x20000
    s_and_b32 s16, s2, 7               ; x
    s_lshr_b32 s17, s2, 3              ; r
    s_lshr_b32 s18, s16, 1
    s_lshl_b32 s18, s18, 2
    s_and_b32 s19, s17, 3
    s_add_u32 s18, s18, s19            ; tb
    s_and_b32 s19, s16, 1
    s_mul_i32 s19, s19, 7
    s_lshr_b32 s17, s17, 2
    s_add_u32 s19, s19, s17            ; fb
    s_lshl_b32 s20, s18, 2
    s_add_u32 s20, s20, s{sW}          ; tt32
    s_lshl_b32 s21, s20, 15
    s_add_u32 s21, s21, {WS['XN2F'][0]}   ; X soffset
    s_mul_i32 s23, s{sW}, {8 * 3584}
    s_lshl_b32 s24, s19, 8
    s_add_u32 s23, s23, s24            ; W soffset
    s_lshl_b32 s24, s{sW}, 11
    s_mov_b32 m0, s24
    v_lshrrev_b32 v4, 4, v0            ; q
    v_and_b32 v5, 15, v0
    v_lshlrev_b32 v6, 2, v4
    v_xor_b32 v5, v5, v6
    v_mul_u32_u24 v2, 3584, v4
    v_lshl_add_u32 v2, v5, 4, v2
    v_add_u32 v3, {4 * 3584 - 1024}, v2
    v_bfe_u32 v5, v0, 2, 2             ; rr
    v_lshrrev_b32 v6, 5, v0            ; hh
    v_lshl_add_u32 v6, v6, 2, v5
    v_lshlrev_b32 v6, 8, v6
    v_and_b32 v7, 1, v4
    v_lshl_add_u32 v6, v7, 5, v6
    v_and_b32 v7, 3, v0
    v_lshl_add_u32 v6, v7, 3, v6
    v_lshl_add_u32 v{AD}, v5, 6, v6
    v_xor_b32 v{AD + 1}, 64, v{AD}
    v_xor_b32 v{AD + 2}, 128, v{AD}
    v_xor_b32 v{AD + 3}, 192, v{AD}
    s_mul_i32 s25, s20, {112 * 1024}
    s_lshl_b32 s26, s19, 13
    s_add_u32 s25, s25, s26
    s_add_u32 s25, s25, {WS['HF'][0]}
    s_add_u32 s26, s25, 4096
    s_waitcnt lgkmcnt(0)
    ''')
    stamp(k, 2)
    vm, lg = [], []
    loads = [(ks, j) for ks in range(16) for j in range(4)]
    def load():
        ks, j = loads.pop(0)
        if j == 0:
            k(f'buffer_load_dwordx4 v2, s[{S1}:{S1 + 3}], s23 offen lds')
        elif j == 1:
            k(f'buffer_load_dwordx4 v3, s[{S1}:{S1 + 3}], s23 offen offset:1024 lds')
            if ks < 15:
                k(f's_add_u32 s23, s23, {32 * 3584}')
                k(f's_mov_b32 m0, s24' if ks % NS == NS - 1 else f's_add_u32 m0, m0, 8192')
        else:
            f = 2 * ks + j - 2
            k(f'buffer_load_dwordx4 {ar(4 * f, 4)}, v1, s[{SW}:{SW + 3}], s21 offen offset:{(f & 3) * 1024}')
            if f & 3 == 3 and f < 31:
                k('s_add_u32 s21, s21, 4096')
        vm.append((ks, j))
    done_vm = [-1]
    def need_vm(x):
        i = vm.index(x)
        if i > done_vm[0]:
            k(f's_waitcnt vmcnt({len(vm) - 1 - i})')
            done_vm[0] = i
    mf = [(ks, h, ft) for ks in range(16 - RT) for h in range(2) for ft in range(4)]
    mf += [(ks, h, ft) for ft in range(4) for ks in range(16 - RT, 16) for h in range(2)]
    opened = [-1]
    def reads(m):
        ks, h, ft = mf[m]
        if ks > opened[0]:
            need_vm((ks, 1))
            k('s_barrier')
            opened[0] = ks
            if ks % 2 == 0:
                stamp(k, 3 + ks // 2)
        for rd in range(2):
            k(f'ds_read_b64_tr_b16 {vr(WB + 4 * (m % NF) + 2 * rd, 2)}, v{AD + ft} offset:{(ks % NS) * 8192 + h * 2048 + rd * 4096}')
            lg.append(m)
    epi = []
    def epilogue(ft):
        out = []
        for e in range(2):
            a = ACC + 16 * ft + 8 * e
            t = T + 12 * ((2 * ft + e) % 4)
            for i in range(8):
                out.append(f'v_exp_f32 v{t + i}, -v{a + i}')
            for i in range(0, 8, 2):
                out.append(f'v_pk_add_f32 {vr(t + i, 2)}, {vr(t + i, 2)}, 1.0 op_sel_hi:[1,0]')
            for i in range(8):
                out.append(f'v_rcp_f32 v{t + i}, v{t + i}')
            for i in range(0, 8, 2):
                out.append(f'v_pk_mul_f32 {vr(t + i, 2)}, {vr(t + i, 2)}, {vr(a + i, 2)}')
            for i in range(0, 8, 2):
                out.append(f'v_cvt_pk_bf16_f32 v{t + 8 + i // 2}, v{t + i}, v{t + i + 1}')
            out.append(f'buffer_store_dwordx4 {vr(t + 8, 4)}, v1, s[{SW}:{SW + 3}], s{25 + ft // 2} offen offset:{((2 * ft + e) & 3) * 1024}')
        return out
    for _ in range(4 * D):
        load()
    for m in range(LA):
        reads(m)
    last = {ft: max(m for m, x in enumerate(mf) if x[2] == ft) for ft in range(4)}
    first = {ft: min(m for m, x in enumerate(mf) if x[2] == ft) for ft in range(4)}
    pend = []
    for m, (ks, h, ft) in enumerate(mf):
        need_vm((ks, 2 + h))
        n = len(lg) - 1 - max(i for i, x in enumerate(lg) if x == m)
        k(f's_waitcnt lgkmcnt({n})')
        Dr = vr(ACC + 16 * ft, 16)
        k(f'v_mfma_f32_32x32x16_bf16 {Dr}, {vr(WB + 4 * (m % NF), 4)}, {ar(4 * (2 * ks + h), 4)}, {Dr if m != first[ft] else 0}')
        if m + LA < len(mf):
            reads(m + LA)
        if loads and m % 2 == 0 and (loads[0][1] >= 2 or loads[0][0] - NS + 2 <= opened[0]):
            load()
        for _ in range(EP):
            if epi:
                x = epi.pop(0)
                k(x)
                if x.startswith('buffer'):
                    vm.append('st')
        epi += pend
        pend = epilogue(ft) if m == last[ft] else []
    assert not loads
    stamp(k, 11)
    for x in epi + pend:
        k(x)
    prof_exit(k, L_END, 3, sW, 14)
    return k

def entry():
    return (gen_k3(), 224, 256, LDS_BYTES)
```

```python
from common import *

NW = 8
LDS_BYTES = 4 * NW * 2048
D = int(os.environ.get('K4D', '8'))

def gen_k4():
    k = Kern('k4_ffn2_kernel')
    L_END = k.newlabel('end')
    SW, SO, S2 = 8, 12, 16
    sW = 3
    WB, ACC, XR, GR, U = 8, 24, 88, 96, 112
    R = 128
    k(f'''
    s_cmp_ge_u32 s2, 256
    s_cbranch_scc1 {L_END}
    ''')
    stamp(k, 0, True)
    stamp(k, 1)
    k(f'''
    s_load_dwordx2 s[{SW}:{SW + 1}], s[0:1], {A_WS}
    s_load_dwordx2 s[{S2}:{S2 + 1}], s[0:1], {B_W2}
    s_load_dwordx2 s[{SO}:{SO + 1}], s[0:1], {A_OUT}
    v_lshrrev_b32 v1, 6, v0
    v_and_b32 v0, 63, v0
    v_readfirstlane_b32 s{sW}, v1
    v_lshlrev_b32 v1, 4, v0            ; lane*16
    s_mov_b32 s{SW + 2}, 0x2000000
    s_mov_b32 s{SW + 3}, 0x20000
    s_mov_b32 s{SO + 2}, {2048 * 1024}
    s_mov_b32 s{SO + 3}, 0x20000
    s_mov_b32 s{S2 + 2}, {1792 * 1024}
    s_mov_b32 s{S2 + 3}, 0x20000
    s_and_b32 s20, s2, 7               ; x
    s_lshr_b32 s21, s2, 3              ; r
    s_lshr_b32 s22, s20, 1
    s_lshl_b32 s22, s22, 3
    s_and_b32 s23, s21, 7
    s_add_u32 s22, s22, s23            ; tb (0..31)
    s_and_b32 s20, s20, 1              ; half
    s_lshl_b32 s23, s20, 2
    s_lshr_b32 s21, s21, 3
    s_add_u32 s23, s23, s21            ; cb (0..7)
    s_lshl_b32 s22, s22, 1
    s_lshr_b32 s21, s{sW}, 1
    s_add_u32 s24, s22, s21
    s_xor_b32 s25, s24, 1
    s_mul_i32 s26, s20, 56
    s_add_u32 s26, s26, s{sW}
    s_lshl_b32 s27, s26, 10
    s_add_u32 s27, s27, {WS['HF'][0]}
    s_mul_i32 s28, s24, {112 * 1024}
    s_mul_i32 s29, s25, {112 * 1024}
    s_add_u32 s28, s28, s27            ; H soffsets
    s_add_u32 s29, s29, s27
    s_lshl_b32 s30, s26, 14
    s_lshl_b32 s31, s23, 7
    s_add_u32 s30, s30, s31            ; W soffset
    s_mul_i32 s31, s20, {-112 * 1024}
    s_lshl_b32 s32, s{sW}, {(NW * 2048).bit_length() - 1}
    s_mov_b32 m0, s32
    v_lshrrev_b32 v4, 3, v0
    v_and_b32 v5, 7, v0
    v_bfe_u32 v6, v0, 4, 1
    v_lshlrev_b32 v6, 2, v6
    v_xor_b32 v5, v5, v6
    v_lshlrev_b32 v2, 10, v4
    v_lshl_add_u32 v2, v5, 4, v2
    v_add_u32 v3, {8 * 1024 - 1024}, v2
    v_bfe_u32 v5, v0, 2, 2             ; rr
    v_lshrrev_b32 v7, 5, v0            ; hh
    v_lshl_add_u32 v4, v7, 2, v5
    v_lshlrev_b32 v4, 7, v4
    v_bfe_u32 v6, v0, 4, 1
    v_lshl_add_u32 v4, v6, 5, v4
    v_and_b32 v6, 3, v0
    v_lshl_add_u32 v4, v6, 3, v4
    v_lshrrev_b32 v5, 1, v5
    s_and_b32 s33, s{sW}, 1
    v_xor_b32 v5, s33, v5
    v_lshl_add_u32 v4, v5, 6, v4
    v_add_u32 v4, s32, v4
    v_xor_b32 v5, 64, v4
    s_lshl_b32 s34, s23, 1
    s_add_u32 s34, s34, s33
    s_lshl_b32 s35, s24, 15
    s_lshl_b32 s36, s34, 11
    s_add_u32 s36, s36, s35
    s_add_u32 s36, s36, {WS['X1F'][0]}
    s_lshl_b32 s37, s23, 10
    s_lshl_b32 s38, s33, 7
    s_add_u32 s37, s37, s38
    s_add_u32 s37, s37, {WS['MOD'][0] + 768}
    s_lshl_b32 s38, s34, 6
    s_add_u32 s38, s38, s35
    v_lshlrev_b32 v6, 4, v7
    v_and_b32 v7, 31, v0
    v_lshl_add_u32 v7, v7, 10, v6
    s_waitcnt lgkmcnt(0)
    ''')
    stamp(k, 2)
    vm = []
    NH = D
    def loads(s):
        k(f'buffer_load_dwordx4 v2, s[{S2}:{S2 + 3}], s30 offen lds')
        k(f'buffer_load_dwordx4 {ar(8 * (s % NH), 4)}, v1, s[{SW}:{SW + 3}], s28 offen')
        k(f'buffer_load_dwordx4 v3, s[{S2}:{S2 + 3}], s30 offen offset:1024 lds')
        k(f'buffer_load_dwordx4 {ar(8 * (s % NH) + 4, 4)}, v1, s[{SW}:{SW + 3}], s29 offen')
        vm.extend([('w', s), ('h', s), ('W', s), ('H', s)])
        if s < 27:
            k(f's_add_u32 s30, s30, 65536')
            k(f's_add_u32 s28, s28, 4096')
            k(f's_add_u32 s29, s29, 4096')
            k(f's_mov_b32 m0, s32' if s % NW == NW - 1 else f's_add_u32 m0, m0, 2048')
        if s == 13:
            k(f's_add_u32 s28, s28, s31')
            k(f's_add_u32 s29, s29, s31')
            k(f's_lshl_b32 s31, s31, 4')
            k(f's_add_u32 s30, s30, s31')
    def need(x):
        k(f's_waitcnt vmcnt({len(vm) - 1 - vm.index(x)})')
    def reads(s):
        need(('W', s))
        for c in range(2):
            for rd in range(2):
                k(f'ds_read_b64_tr_b16 {vr(WB + 8 * (s & 1) + 4 * c + 2 * rd, 2)}, v{4 + c} offset:{(s % NW) * 2048 + rd * 1024}')
    for s in range(D):
        loads(s)
    stamp(k, 3)
    reads(0)
    for s in range(28):
        need(('H', s))
        k('s_waitcnt lgkmcnt(0)')
        if s % 4 == 0:
            stamp(k, 4 + s // 4)
        order = [(1, 1), (1, 0), (0, 1), (0, 0)]
        for n, (t, c) in enumerate(order):
            Dr = vr(ACC + 32 * t + 16 * c, 16)
            k(f'v_mfma_f32_32x32x16_bf16 {Dr}, {vr(WB + 8 * (s & 1) + 4 * c, 4)}, {ar(8 * (s % NH) + 4 * t, 4)}, {Dr if s else 0}')
        if s + D < 28:
            loads(s + D)
        if s + D == 28:
            k(f'buffer_load_dwordx4 {vr(XR, 4)}, v1, s[{SW}:{SW + 3}], s36 offen')
            k(f'buffer_load_dwordx4 {vr(XR + 4, 4)}, v1, s[{SW}:{SW + 3}], s36 offen offset:1024')
            for q in range(4):
                k(f'buffer_load_dwordx4 {vr(GR + 4 * q, 4)}, v6, s[{SW}:{SW + 3}], s37 offen offset:{q * 32}')
            vm.extend(['e'] * 6)
        if s + 1 < 28:
            reads(s + 1)
    stamp(k, 11)
    k(f'''
    v_add_u32 v2, s32, v1
    v_xor_b32 v3, {1 * NW * 2048}, v2
    v_xor_b32 v4, {2 * NW * 2048}, v2
    v_xor_b32 v5, {3 * NW * 2048}, v2
    ''')
    for q in (3, 2, 1):
        for i in range(4):
            k(f'ds_write_b128 v2, {vr(ACC + 16 * q + 4 * i, 4)} offset:{q * 4096 + i * 1024}')
    k('s_waitcnt vmcnt(0)')
    for i in range(4):
        src = XR + 4 * (i & 1) + 2 * (i >> 1)
        for d in range(2):
            unpack(k, U + 4 * i + 2 * d, U + 4 * i + 2 * d + 1, src + d)
    k('s_waitcnt lgkmcnt(0)')
    k('s_barrier')
    stamp(k, 12)
    for i in range(4):
        for q in (1, 2, 3):
            k(f'ds_read_b128 {vr(R + 12 * i + 4 * (q - 1), 4)}, v{2 + q} offset:{q * 4096 + i * 1024}')
    for i in range(4):
        r, a = R + 12 * i, ACC + 4 * i
        k(f's_waitcnt lgkmcnt({9 - 3 * i})')
        for h in (0, 2):
            k(f'v_pk_add_f32 {vr(a + h, 2)}, {vr(a + h, 2)}, {vr(r + h, 2)}')
            k(f'v_pk_add_f32 {vr(r + 4 + h, 2)}, {vr(r + 4 + h, 2)}, {vr(r + 8 + h, 2)}')
        for h in (0, 2):
            k(f'v_pk_add_f32 {vr(a + h, 2)}, {vr(a + h, 2)}, {vr(r + 4 + h, 2)}')
        for h in (0, 2):
            k(f'v_pk_fma_f32 {vr(a + h, 2)}, {vr(a + h, 2)}, {vr(GR + 4 * i + h, 2)}, {vr(U + 4 * i + h, 2)}')
        for h in (0, 2):
            k(f'v_cvt_pk_bf16_f32 v{XR + 2 * i + h // 2}, v{a + h}, v{a + h + 1}')
        if i & 1:
            b = XR + 2 * i - 2
            k(f'v_permlane32_swap_b32 v{b}, v{b + 2}')
            k(f'v_permlane32_swap_b32 v{b + 1}, v{b + 3}')
            k(f'buffer_store_dwordx4 {vr(b, 4)}, v7, s[{SO}:{SO + 3}], s38 offen offset:{(i // 2) * 32}')
    prof_exit(k, L_END, 4, sW, 15)
    return k

def entry():
    return (gen_k4(), 256, 256, LDS_BYTES)
```

```python
from common import *

def gen_k0():
    k = Kern('k0_prep_kernel')
    L_LN, L_END, L_G0, L_AFTERDMA, L_G1, L_SA, L_NOKV, L_NOKV2, L_KVDMA = [k.newlabel(x) for x in
        ('ln', 'end', 'g0', 'afterdma', 'g1', 'sa', 'nokv', 'nokv2', 'kvdma')]
    PART, SV, WT, KVT = 0, 2048, 4096, 4096 + 16384
    k(f'''
    s_cmp_ge_u32 s2, 256
    s_cbranch_scc1 {L_END}
    ''')
    stamp(k, 0, True)
    stamp(k, 1)
    k(f'''
    s_load_dwordx2 s[4:5], s[0:1], {A_WS}
    v_lshrrev_b32 v1, 6, v0
    v_and_b32 v2, 63, v0
    v_readfirstlane_b32 s3, v1
    s_cmp_ge_u32 s2, 128
    s_cbranch_scc1 {L_LN}
    ''')
    SC, SWM, SWQ, SKV, SOUT = 8, 12, 16, 20, 24
    srd_arg_load(k, SC, A_C)
    srd_arg_load(k, SWM, A_WMOD)
    srd_arg_load(k, SWQ, A_WQ)
    k(f's_load_dwordx4 s[28:31], s[0:1], {A_WK}')
    srd_fin(k, SC, 1024)
    srd_fin(k, SWM, 512 * 6144)
    srd_fin(k, SWQ, 512 * 1024)
    k(f'''
    v_lshrrev_b32 v3, 2, v0            ; rg
    v_and_b32 v4, 3, v0                ; ch
    v_mul_u32_u24 v5, {8 * 6144}, v3
    v_lshl_add_u32 v5, v4, 4, v5
    v_lshlrev_b32 v6, 4, v3            ; c voffset
    s_and_b32 s32, s2, 7               ; x
    s_lshr_b32 s33, s2, 3              ; y (0..15)
    s_cmp_ge_u32 s2, 64
    s_cbranch_scc1 {L_G0}
    s_lshr_b32 s34, s33, 2
    s_and_b32 s35, s33, 1
    s_lshl_b32 s36, s32, 1
    s_add_u32 s36, s36, s35            ; ks
    s_lshr_b32 s37, s33, 1
    s_and_b32 s37, s37, 1              ; half
    s_lshl_b32 s38, s36, 6
    s_cmp_eq_u32 s34, 0
    s_cselect_b32 s39, 1024, 0
    s_add_u32 s38, s38, s39            ; colbase*2
    v_lshrrev_b32 v7, 5, v2
    v_and_b32 v8, 31, v2
    v_lshlrev_b32 v7, 10, v7
    v_lshl_add_u32 v7, v8, 4, v7
    s_lshl_b32 s40, s36, 15
    s_lshl_b32 s41, s3, 13             ; w*8 rows
    s_add_u32 s40, s40, s41
    s_lshl_b32 s41, s37, 9
    s_add_u32 s40, s40, s41            ; + half*512
    s_lshl_b32 s42, s3, 12
    s_add_u32 s42, s42, {WT}
    s_waitcnt lgkmcnt(0)
    ''')
    for i in range(4):
        k(f's_mov_b32 m0, s42')
        k(f's_add_u32 s42, s42, 1024')
        k(f'buffer_load_dwordx4 v7, s[{SWQ}:{SWQ + 3}], s40 offen lds')
        k(f's_add_u32 s40, s40, 2048')
    k(f'''
    s_cmp_eq_u32 s37, 0
    s_cbranch_scc1 {L_AFTERDMA}
    s_cmp_ge_u32 s3, 2
    s_cbranch_scc1 {L_AFTERDMA}
    s_cmp_eq_u32 s3, 0
    s_cselect_b32 s{SKV}, s28, s30
    s_cselect_b32 s{SKV + 1}, s29, s31
    ''')
    srd_fin(k, SKV, 512 * 32)
    k(f'''
    v_lshlrev_b32 v8, 4, v2
    s_lshl_b32 s40, s36, 10
    s_lshl_b32 s42, s3, 10
    s_add_u32 s42, s42, {KVT}
    s_mov_b32 m0, s42
    s_nop 0
    buffer_load_dwordx4 v8, s[{SKV}:{SKV + 3}], s40 offen lds
    s_branch {L_AFTERDMA}
    {L_G0}:
    s_sub_u32 s33, s33, 8              ; y'
    s_lshr_b32 s34, s33, 1
    s_lshl_b32 s34, s34, 3
    s_add_u32 s34, s34, s32
    s_lshl_b32 s34, s34, 1
    s_and_b32 s35, s33, 1
    s_add_u32 s36, s34, s35
    s_lshl_b32 s38, s36, 6
    s_add_u32 s38, s38, 2048           ; colbase*2
    s_mov_b32 s34, 2                   ; role G
    s_waitcnt lgkmcnt(0)
    {L_AFTERDMA}:
    ''')
    stamp(k, 2)
    k(f'''
    buffer_load_dwordx4 v[8:11], v6, s[{SC}:{SC + 3}], 0 offen
    ''')
    W0 = 12
    for i in range(8):
        k(f'buffer_load_dwordx4 {vr(W0 + 4 * i, 4)}, v5, s[{SWM}:{SWM + 3}], s38 offen')
        if i < 7:
            k(f's_add_u32 s38, s38, 6144')
    S0 = 44
    T0 = 52
    ACC = 60
    k('s_waitcnt vmcnt(8)')
    stamp(k, 3)
    for d in range(4):
        unpack(k, S0 + 2 * d, S0 + 2 * d + 1, 8 + d)
    for j in range(8):
        k(f'v_mul_f32 v{T0 + j}, {f32bits(-LOG2E)}, v{S0 + j}')
    for j in range(8):
        k(f'v_exp_f32 v{T0 + j}, v{T0 + j}')
    for j in range(8):
        k(f'v_add_f32 v{T0 + j}, 1.0, v{T0 + j}')
    for j in range(8):
        k(f'v_rcp_f32 v{T0 + j}, v{T0 + j}')
    for j in range(8):
        k(f'v_mul_f32 v{T0 + j}, v{S0 + j}, v{T0 + j}')
    for d in range(4):
        k(f'v_cvt_pk_bf16_f32 v{8 + d}, v{T0 + 2 * d}, v{T0 + 2 * d + 1}')
    for d in range(4):
        unpack(k, S0 + 2 * d, S0 + 2 * d + 1, 8 + d)
    for i in range(8):
        k(f's_waitcnt vmcnt({7 - i})')
        for d in range(4):
            unpack(k, T0 + 2 * d, T0 + 2 * d + 1, W0 + 4 * i + d)
        for j in range(8):
            if i == 0:
                k(f'v_mul_f32 v{ACC + j}, v{T0 + j}, v{S0}')
            else:
                k(f'v_fmac_f32 v{ACC + j}, v{T0 + j}, v{S0 + i}')
    stamp(k, 4)
    for rot in (4, 8):
        for j in range(8):
            k(f'v_add_f32_dpp v{ACC + j}, v{ACC + j}, v{ACC + j} row_ror:{rot} row_mask:0xf bank_mask:0xf')
    k(f'''
    v_lshrrev_b32 v5, 4, v0            ; p = tid>>4
    v_lshlrev_b32 v5, 7, v5
    v_lshl_add_u32 v5, v4, 5, v5
    ds_write_b128 v5, {vr(ACC, 4)} offset:{PART}
    ds_write_b128 v5, {vr(ACC + 4, 4)} offset:{PART + 16}
    v_and_b32 v6, 31, v0
    v_lshlrev_b32 v6, 2, v6            ; col*4
    s_waitcnt lgkmcnt(0)
    s_barrier
    ''')
    for p in range(16):
        k(f'ds_read_b32 v{W0 + p}, v6 offset:{PART + p * 128}')
    stamp(k, 5)
    k('s_waitcnt lgkmcnt(8)')
    for p in range(4):
        k(f'v_add_f32 v{W0 + p}, v{W0 + p}, v{W0 + p + 4}')
    k('s_waitcnt lgkmcnt(0)')
    for p in range(4):
        k(f'v_add_f32 v{W0 + 8 + p}, v{W0 + 8 + p}, v{W0 + p + 12}')
    for p in range(4):
        k(f'v_add_f32 v{W0 + p}, v{W0 + p}, v{W0 + p + 8}')
    k(f'''
    v_add_f32 v{W0}, v{W0}, v{W0 + 1}
    v_add_f32 v{W0 + 2}, v{W0 + 2}, v{W0 + 3}
    v_add_f32 v{W0}, v{W0}, v{W0 + 2}
    v_cvt_pk_bf16_f32 v{W0}, v{W0}, v{W0}
    v_and_b32 v{W0}, 0xffff0000, v{W0}
    s_cmp_eq_u32 s34, 2
    s_cbranch_scc1 {L_G1}
    ''')
    srd_ws(k, SOUT, 4, 'WQKV')
    k(f'''
    v_add_f32 v{W0 + 1}, 1.0, v{W0}
    v_cvt_pk_bf16_f32 v{W0 + 1}, v{W0 + 1}, v{W0 + 1}
    v_and_b32 v{W0 + 1}, 0xffff0000, v{W0 + 1}
    s_cmp_eq_u32 s34, 0
    s_cselect_b64 vcc, -1, 0
    v_cndmask_b32 v{W0}, v{W0}, v{W0 + 1}, vcc
    s_lshl_b32 s40, s3, 7
    v_add_u32 v6, s40, v6
    ds_write_b32 v6, v{W0} offset:{SV}
    v_lshrrev_b32 v7, 4, v2            ; g
    v_lshl_add_u32 v8, v7, 4, s40      ; w*128 + g*16
    v_bfe_u32 v9, v2, 2, 2
    v_lshl_add_u32 v9, v7, 2, v9       ; row
    v_and_b32 v10, 3, v2
    v_lshlrev_b32 v10, 3, v10
    v_lshl_add_u32 v11, v9, 5, v10
    v_lshl_add_u32 v10, v9, 9, v10
    s_lshl_b32 s41, s3, 5
    v_add_u32 v10, s41, v10            ; + w*32
    s_lshl_b32 s41, s3, 10
    v_add_u32 v11, s41, v11
    s_waitcnt lgkmcnt(0)
    ds_read_b128 {vr(S0, 4)}, v8 offset:{SV}
    ds_read_b128 {vr(S0 + 4, 4)}, v8 offset:{SV + 64}
    ''')
    F0 = 12
    for q in range(4):
        k(f'ds_read_b64_tr_b16 {vr(F0 + 4 * q, 2)}, v10 offset:{WT + q * 128}')
        k(f'ds_read_b64_tr_b16 {vr(F0 + 4 * q + 2, 2)}, v10 offset:{WT + q * 128 + 16 * 512}')
    k(f'ds_read_b64_tr_b16 {vr(F0 + 16, 2)}, v11 offset:{KVT}')
    k(f'ds_read_b64_tr_b16 {vr(F0 + 18, 2)}, v11 offset:{KVT + 512}')
    k(f'''
    s_cmp_lt_u32 s3, 2
    s_cselect_b32 s43, s37, 0
    s_lshl_b32 s44, s37, 4
    s_add_u32 s44, s44, s3
    s_cmp_eq_u32 s34, 1
    s_cbranch_scc1 {L_SA}
    ''')
    SQ = 32
    k(f'''
    v_lshlrev_b32 v5, 4, v2
    s_mul_i32 s45, s36, 34
    s_add_u32 s46, s45, s44
    s_lshl_b32 s46, s46, 10
    s_waitcnt lgkmcnt(0)
    ''')
    for j in range(8):
        k(f'v_mul_f32 v{SQ + j}, {f32bits(QS)}, v{S0 + j}')
    def scale_store(f, sbase, soff):
        for d in range(4):
            unpack(k, T0 + 2 * d, T0 + 2 * d + 1, f + d)
        for j in range(8):
            k(f'v_mul_f32 v{T0 + j}, v{T0 + j}, v{sbase + j}')
        for d in range(4):
            k(f'v_cvt_pk_bf16_f32 v{f + d}, v{T0 + 2 * d}, v{T0 + 2 * d + 1}')
        k(f'buffer_store_dwordx4 {vr(f, 4)}, v5, s[{SOUT}:{SOUT + 3}], {soff} offen')
    for q in range(4):
        scale_store(F0 + 4 * q, SQ, 's46')
        k('s_add_u32 s46, s46, 4096')
    k(f'''
    s_cmp_eq_u32 s43, 0
    s_cbranch_scc1 {L_END}
    s_add_u32 s46, s45, 32
    s_add_u32 s46, s46, s3
    s_lshl_b32 s46, s46, 10
    ''')
    scale_store(F0 + 16, S0, 's46')
    k('s_endpgm')
    k(f'''
    {L_SA}:
    v_and_b32 v5, 15, v2
    v_lshlrev_b32 v5, 4, v5
    s_lshr_b32 s45, s36, 2
    s_lshl_b32 s45, s45, 8
    s_and_b32 s46, s36, 3
    s_lshl_b32 s46, s46, 2
    s_add_u32 s45, s45, s46
    s_add_u32 s45, s45, {16 * 34 * 1024}
    s_lshl_b32 s46, s44, 10
    s_add_u32 s46, s46, s45
    s_waitcnt lgkmcnt(0)
    ''')
    for d in range(4):
        k(f'v_cvt_pk_bf16_f32 v{SQ + d}, v{S0 + 2 * d}, v{S0 + 2 * d + 1}')
    D0 = 68
    for q in range(5):
        k(f'v_mfma_f32_16x16x32_bf16 {vr(D0 + 4 * q, 4)}, {vr(SQ, 4)}, {vr(F0 + 4 * q, 4)}, 0')
    def bias_store(d, scale, soff):
        if scale:
            k(f'v_mul_f32 v{d}, {f32bits(QS)}, v{d}')
        k(f'v_cvt_pk_bf16_f32 v{d + 1}, v{d}, v{d}')
        k(f'v_and_b32 v{d + 1}, 0xffff0000, v{d + 1}')
        k(f'v_sub_f32 v{d + 1}, v{d}, v{d + 1}')
        k(f'v_cvt_pk_bf16_f32 v{d}, v{d}, v{d + 1}')
        k(f'buffer_store_dword v{d}, v5, s[{SOUT}:{SOUT + 3}], {soff} offen')
    for q in range(4):
        bias_store(D0 + 4 * q, True, 's46')
        k('s_add_u32 s46, s46, 4096')
    k(f'''
    s_cmp_eq_u32 s43, 0
    s_cbranch_scc1 {L_END}
    s_add_u32 s46, s3, 32
    s_lshl_b32 s46, s46, 10
    s_add_u32 s46, s46, s45
    ''')
    bias_store(D0 + 16, False, 's46')
    k('s_endpgm')
    k(f'{L_G1}:')
    srd_ws(k, SOUT, 4, 'MOD')
    k(f'''
    s_lshl_b32 s40, s36, 7
    buffer_store_dword v{W0}, v6, s[{SOUT}:{SOUT + 3}], s40 offen
    s_endpgm
    ''')
    SX = 8
    k(f'{L_LN}:')
    srd_arg_load(k, SX, A_X)
    srd_fin(k, SX, 2048 * 1024)
    X0 = 8
    k(f'''
    s_sub_u32 s32, s2, 128             ; tt
    v_and_b32 v3, 15, v2               ; t16
    v_lshrrev_b32 v4, 4, v2            ; g
    v_lshlrev_b32 v5, 10, v3
    v_lshl_add_u32 v5, v4, 3, v5
    s_lshl_b32 s33, s32, 14
    s_lshl_b32 s34, s3, 8
    s_add_u32 s34, s34, s33
    s_waitcnt lgkmcnt(0)
    ''')
    stamp(k, 2)
    for i in range(4):
        k(f'buffer_load_dwordx2 {vr(X0 + 4 * i, 2)}, v5, s[{SX}:{SX + 3}], s34 offen offset:{i * 64}')
        k(f'buffer_load_dwordx2 {vr(X0 + 4 * i + 2, 2)}, v5, s[{SX}:{SX + 3}], s34 offen offset:{i * 64 + 32}')
    srd_ws(k, SOUT, 4, 'XNF')
    U0 = 24
    k('v_mov_b32 v6, 0')
    k('v_mov_b32 v7, 0')
    for i in range(8):
        k(f's_waitcnt vmcnt({7 - i})')
        if i == 0:
            stamp(k, 3)
        for d in range(2):
            unpack(k, U0 + 4 * i + 2 * d, U0 + 4 * i + 2 * d + 1, X0 + 2 * i + d)
        for j in range(4):
            k(f'v_add_f32 v6, v6, v{U0 + 4 * i + j}')
            k(f'v_fmac_f32 v7, v{U0 + 4 * i + j}, v{U0 + 4 * i + j}')
    stamp(k, 4)
    ln_stats_and_scale(k, 6, 7, tmp=56, lane=2, t16=3, wave_s=3, ldsoff=0)
    stamp(k, 5)
    k('v_lshlrev_b32 v5, 4, v2')
    k('s_lshl_b32 s34, s3, 12')
    k('s_add_u32 s34, s34, s33')
    for i in range(4):
        for j in range(8):
            k(f'v_fma_f32 v{U0 + 8 * i + j}, v{U0 + 8 * i + j}, v56, v57')
        for d in range(4):
            k(f'v_cvt_pk_bf16_f32 v{X0 + 4 * i + d}, v{U0 + 8 * i + 2 * d}, v{U0 + 8 * i + 2 * d + 1}')
        k(f'buffer_store_dwordx4 {vr(X0 + 4 * i, 4)}, v5, s[{SOUT}:{SOUT + 3}], s34 offen offset:{i * 1024}')
    prof_exit(k, L_END, 0, 3, 8)
    return k


def ln_stats_and_scale(k, vS, vQ, tmp, lane, t16, wave_s, ldsoff):
    a, b = tmp, tmp + 1
    k(f'''
    v_permlane32_swap_b32 v{vS}, v{vQ}
    v_add_f32 v{a}, v{vS}, v{vQ}
    v_mov_b32 v{b}, v{a}
    v_permlane16_swap_b32 v{a}, v{b}
    v_add_f32 v{a}, v{a}, v{b}
    v_lshrrev_b32 v{b}, 5, v{lane}
    v_lshlrev_b32 v{b}, 8, v{b}
    v_lshl_add_u32 v{b}, v{t16}, 4, v{b}
    s_lshl_b32 s60, s{wave_s}, 2
    v_add_u32 v{b}, s60, v{b}
    ds_write_b32 v{b}, v{a} offset:{ldsoff}
    v_lshlrev_b32 v{b}, 4, v{t16}
    s_waitcnt lgkmcnt(0)
    s_barrier
    ds_read_b128 {vr(tmp + 2, 4)}, v{b} offset:{ldsoff}
    ds_read_b128 {vr(tmp + 6, 4)}, v{b} offset:{ldsoff + 256}
    s_waitcnt lgkmcnt(0)
    v_add_f32 v{tmp + 2}, v{tmp + 2}, v{tmp + 3}
    v_add_f32 v{tmp + 6}, v{tmp + 6}, v{tmp + 7}
    v_add_f32 v{tmp + 4}, v{tmp + 4}, v{tmp + 5}
    v_add_f32 v{tmp + 8}, v{tmp + 8}, v{tmp + 9}
    v_add_f32 v{tmp + 2}, v{tmp + 2}, v{tmp + 4}
    v_add_f32 v{tmp + 6}, v{tmp + 6}, v{tmp + 8}
    v_mul_f32 v{tmp + 2}, {f32bits(1.0 / 512)}, v{tmp + 2}      ; mean
    v_mul_f32 v{tmp + 6}, {f32bits(1.0 / 512)}, v{tmp + 6}      ; E[x^2]
    v_fma_f32 v{tmp + 6}, -v{tmp + 2}, v{tmp + 2}, v{tmp + 6}   ; var
    v_max_f32 v{tmp + 6}, 0, v{tmp + 6}
    v_cvt_pk_bf16_f32 v{tmp + 6}, v{tmp + 6}, v{tmp + 2}
    v_and_b32 v{tmp + 2}, 0xffff0000, v{tmp + 6}
    v_lshlrev_b32 v{tmp + 6}, 16, v{tmp + 6}
    v_add_f32 v{tmp + 6}, {f32bits(1e-5)}, v{tmp + 6}
    v_cvt_pk_bf16_f32 v{tmp + 6}, v{tmp + 6}, v{tmp + 6}
    v_lshlrev_b32 v{tmp + 6}, 16, v{tmp + 6}
    v_sqrt_f32 v{tmp + 6}, v{tmp + 6}
    v_cvt_pk_bf16_f32 v{tmp + 6}, v{tmp + 6}, v{tmp + 6}
    v_lshlrev_b32 v{tmp + 6}, 16, v{tmp + 6}
    v_rcp_f32 v{a}, v{tmp + 6}
    v_mul_f32 v{b}, -v{tmp + 2}, v{a}
    ''')
```

```python
import sys, re
from common import *
import gen
ks = gen.kernels()
for k, *_ in ks:
    k.fix_hazards()
base = build_file(gen.HEADER, ks)
open('v_base.s', 'w').write(base)
for name, mod in (('sc1', 'sc1'), ('nt', 'nt'), ('sc01', 'sc0 sc1')):
    t = re.sub(r'^(\s+buffer_store_dword\S*\s.*)$', lambda m: m.group(1) + ' ' + mod, base, flags=re.M)
    open(f'v_{name}.s', 'w').write(t)
```
